```python
import torch

def _softmax(x, axis=-1):
    return torch.softmax(x, dim=axis)
def _gelu(x):
    return torch.nn.functional.gelu(x, approximate="tanh")
def _silu(x):
    return torch.nn.functional.silu(x)
def _sigmoid(x):
    return torch.sigmoid(x)
def _layernorm(x, axis=-1, eps=1e-5):
    m = x.mean(dim=axis, keepdim=True)
    v = x.var(dim=axis, keepdim=True, unbiased=False)
    return (x - m) / torch.sqrt(v + eps)
def _scatter_add(tgt, idx, src, axis=0):
    return tgt.clone().index_add_(axis, idx, src)
def _segment_sum(src, seg, n):
    out = torch.zeros((n,) + src.shape[1:], dtype=src.dtype)
    return out.index_add_(0, seg, src)
def _pad(x, pw):
    flat = tuple(v for pair in reversed(pw) for v in pair)
    return torch.nn.functional.pad(x, flat)

kernel_name = 'concat_heads__gqa_block_cached__mha_block_cached__near_ridge'

def setup_inputs():

    _w = (lambda a: (lambda t: t.to(torch.bfloat16) if t.is_floating_point() else t)(torch.as_tensor(a)))
    def _A_setup():
        B, Sq, D = 8, 64, 576
        Hq, Hkv, Sk, Dh = 32, 16, 512, 128
        assert Hq % Hkv == 0, (Hq, Hkv)
        return {
            "x": _w((lambda *s: torch.randn(*s, dtype=torch.bfloat16) * 0.8)(B, Sq, D)),
            "k_cache": _w((lambda *s: torch.randn(*s, dtype=torch.bfloat16) * 0.8)(B, Hkv, Sk, Dh)),
            "v_cache": _w((lambda *s: torch.randn(*s, dtype=torch.bfloat16) * 0.05)(B, Hkv, Sk, Dh)),
            "wq": _w((lambda *s: torch.randn(*s, dtype=torch.bfloat16) * 0.8)(D, Hq * Dh) * (D ** -0.5)),
            "wo": _w((lambda *s: torch.randn(*s, dtype=torch.bfloat16) * 0.05)(Hq * Dh, D) * ((Hq * Dh) ** -0.5)),
        }
    _A_in = _A_setup()

    def _B_setup():
        B, Sq, D = 8, 64, 576
        H, Sk, Dh = 32, 512, 128
        return {
            "x": _w((lambda *s: torch.randn(*s, dtype=torch.bfloat16) * 0.8)(B, Sq, D)),
            "k_cache": _w((lambda *s: torch.randn(*s, dtype=torch.bfloat16) * 0.8)(B, H, Sk, Dh)),
            "v_cache": _w((lambda *s: torch.randn(*s, dtype=torch.bfloat16) * 0.05)(B, H, Sk, Dh)),
            "wq": _w((lambda *s: torch.randn(*s, dtype=torch.bfloat16) * 0.8)(D, H * Dh) * (D ** -0.5)),
            "wo": _w((lambda *s: torch.randn(*s, dtype=torch.bfloat16) * 0.05)(H * Dh, D) * ((H * Dh) ** -0.5)),
        }
    _B_in = _B_setup()

    return {
        "A_x": _A_in["x"],
        "A_k_cache": _A_in["k_cache"],
        "A_v_cache": _A_in["v_cache"],
        "A_wq": _A_in["wq"],
        "A_wo": _A_in["wo"],
        "B_x": _B_in["x"],
        "B_k_cache": _B_in["k_cache"],
        "B_v_cache": _B_in["v_cache"],
        "B_wq": _B_in["wq"],
        "B_wo": _B_in["wo"],
    }

def reference(A_x, A_k_cache, A_v_cache, A_wq, A_wo, B_x, B_k_cache, B_v_cache, B_wq, B_wo):
    def _A_ref(x, k_cache, v_cache, wq, wo):
        B, Sq, D = x.shape
        Hq, Dh = 32, 128
        Hkv = k_cache.shape[1]
        rep = Hq // Hkv
        q = (lambda x, *d: x.permute(*d))((x @ wq).reshape(B, Sq, Hq, Dh), 0, 2, 1, 3)
        k = (lambda x, n, axis: torch.repeat_interleave(x, n, dim=axis))(k_cache, rep, axis=1)
        v = (lambda x, n, axis: torch.repeat_interleave(x, n, dim=axis))(v_cache, rep, axis=1)
        scores = torch.einsum("bhqd,bhkd->bhqk", q, k) * (Dh ** -0.5)
        p = _softmax(scores, axis=-1)
        o = torch.einsum("bhqk,bhkd->bhqd", p, v)
        return (lambda x, *d: x.permute(*d))(o, 0, 2, 1, 3).reshape(B, Sq, Hq * Dh) @ wo

    def _B_ref(x, k_cache, v_cache, wq, wo):
        B, Sq, D = x.shape
        H, Dh = 32, 128
        q = (lambda x, *d: x.permute(*d))((x @ wq).reshape(B, Sq, H, Dh), 0, 2, 1, 3)
        scores = torch.einsum("bhqd,bhkd->bhqk", q, k_cache) * (Dh ** -0.5)
        p = _softmax(scores, axis=-1)
        o = torch.einsum("bhqk,bhkd->bhqd", p, v_cache)
        return (lambda x, *d: x.permute(*d))(o, 0, 2, 1, 3).reshape(B, Sq, H * Dh) @ wo

    a = _A_ref(A_x, A_k_cache, A_v_cache, A_wq, A_wo)
    b = _B_ref(B_x, B_k_cache, B_v_cache, B_wq, B_wo)
    return torch.concatenate([a, b], axis=-1)
```

```python
import re

def regs_of(tok):
    tok = tok.strip().lstrip("-")
    m = re.fullmatch(r"(?:abs\()?([vsa])(\d+)\)?", tok)
    if m:
        return [(m.group(1), int(m.group(2)))]
    m = re.fullmatch(r"([vsa])\[(\d+):(\d+)\]", tok)
    if m:
        return [(m.group(1), i) for i in range(int(m.group(2)), int(m.group(3)) + 1)]
    if tok in ("vcc", "exec", "m0", "scc"):
        return [(tok, 0)]
    return []

TRANS = ("v_exp_f32", "v_log_f32", "v_rcp_f32", "v_rsq_f32", "v_sqrt_f32")

class Ins:
    __slots__ = ("text", "op", "rd", "wr", "kind", "srcc", "data")
    def __init__(self, text):
        self.text = text
        t = text.split(";")[0].strip()
        parts = t.split(None, 1)
        self.op = parts[0]
        ops = []
        if len(parts) > 1:
            cur = ""; depth = 0
            for ch in parts[1]:
                if ch == "[": depth += 1
                if ch == "]": depth -= 1
                if ch == "," and depth == 0:
                    ops.append(cur.strip()); cur = ""
                else:
                    cur += ch
            ops.append(cur.strip())
            ops = [o.split()[0] if o else o for o in ops]
        op = self.op
        self.rd = []; self.wr = []; self.srcc = []; self.data = []
        R = lambda i: regs_of(ops[i]) if i < len(ops) else []
        if op.startswith("v_mfma"):
            self.kind = "mfma"
            self.wr = R(0); self.rd = R(1) + R(2) + R(3); self.srcc = R(3)
        elif op.startswith("ds_read"):
            self.kind = "dsr"; self.wr = R(0); self.rd = R(1)
        elif op.startswith("ds_write"):
            self.kind = "dsw"; self.rd = R(0) + R(1) + R(2)
        elif op.startswith("buffer_load") or op.startswith("global_load"):
            self.kind = "vmem"
            if " lds" in t:
                self.rd = sum((R(i) for i in range(len(ops))), []) + [("m0", 0)]
                self.kind = "dma"
            else:
                self.wr = R(0); self.rd = sum((R(i) for i in range(1, len(ops))), [])
        elif op.startswith("buffer_store"):
            self.kind = "vmem"; self.rd = sum((R(i) for i in range(len(ops))), [])
            if "x4" in op or "x3" in op: self.data = R(0)
        elif op.startswith("global_store") or op.startswith("global_atomic"):
            self.kind = "vmem"; self.rd = sum((R(i) for i in range(len(ops))), [])
            if "x4" in op or "x3" in op: self.data = R(1)
        elif op.startswith("v_permlane"):
            self.kind = "perm"; self.wr = R(0) + R(1); self.rd = R(0) + R(1)
        elif op.startswith("v_readfirstlane") or op.startswith("v_readlane"):
            self.kind = "rdlane"; self.wr = R(0); self.rd = R(1)
        elif op.startswith("v_writelane"):
            self.kind = "valu"; self.wr = R(0); self.rd = R(0) + R(1)
        elif op.startswith("v_cmp"):
            self.kind = "valu"; self.wr = R(0); self.rd = R(1) + R(2)
        elif op.startswith("v_"):
            self.kind = "trans" if op in TRANS else "valu"
            self.wr = R(0); self.rd = sum((R(i) for i in range(1, len(ops))), [])
            if op.startswith("v_fmac") or op.startswith("v_dot2c"): self.rd += R(0)
            if op.startswith("v_cndmask") and len(ops) == 3: self.rd += [("vcc", 0)]
        elif op == "s_nop":
            self.kind = "nop"
        elif op.startswith("s_"):
            self.kind = "salu"
            if op.startswith("s_cmp") or op.startswith("s_cbranch") or op in ("s_barrier", "s_waitcnt", "s_branch", "s_endpgm", "s_sleep", "s_setprio"):
                self.rd = sum((R(i) for i in range(len(ops))), [])
            else:
                self.wr = R(0); self.rd = sum((R(i) for i in range(1, len(ops))), [])
        else:
            raise ValueError("unknown op " + text)
    def states(self):
        if self.kind == "nop":
            return int(self.text.split()[1]) + 1
        return 1

VALUISH = ("valu", "trans", "perm", "rdlane")

def need(prod, cons):
    n = 0
    pw = set(prod.wr); cr = set(cons.rd); cw = set(cons.wr)
    if prod.kind in VALUISH:
        pv = {r for r in pw if r[0] == "v"}
        ps = {r for r in pw if r[0] in ("s", "vcc")}
        if cons.kind == "mfma" and pv & cr: n = max(n, 2)
        if cons.kind == "perm" and pv & cr: n = max(n, 2)
        if cons.kind == "rdlane" and pv & cr: n = max(n, 1)
        if prod.kind == "trans" and cons.kind in VALUISH and pv & cr: n = max(n, 1)
        if ps & cr:
            if cons.kind in ("vmem", "dma"): n = max(n, 5)
            elif cons.kind in VALUISH: n = max(n, 2)
            elif cons.kind == "salu": n = max(n, 1)
    if prod.kind == "mfma":
        if cons.kind == "mfma":
            ab = cr - set(cons.srcc)
            if pw & ab: n = max(n, 12)
            if pw & set(cons.srcc) and prod.wr != cons.srcc: n = max(n, 10)
            if pw & cw and not (pw & set(cons.srcc)): n = max(n, 12)
        else:
            if pw & (cr | cw): n = max(n, 12)
            if cons.kind in VALUISH and set(prod.srcc) & cw: n = max(n, 7)
    if prod.data and cons.kind in VALUISH + ("dsr", "vmem", "mfma") and set(prod.data) & cw: n = max(n, 2)
    if prod.kind == "salu" and ("m0", 0) in pw and cons.kind == "dma": n = max(n, 1)
    return n

class Stream:
    def __init__(self):
        self.out = []
        self.hist = []
        self.lgkm = []
        self.npad = 0
    def raw(self, s):
        self.out.append(s)
    def label(self, name):
        self.out.append(name + ":")
    def _emit(self, ins):
        dist = 0; req = 0
        for p in reversed(self.hist):
            r = need(p, ins) - dist
            if r > req: req = r
            dist += p.states()
            if dist >= 20: break
        while req > 0:
            k = min(req, 16)
            nop = Ins(f"s_nop {k-1}")
            self.out.append(nop); self.hist.append(nop); self.npad += k
            req -= k
        self.out.append(ins); self.hist.append(ins)
        if len(self.hist) > 64: self.hist = self.hist[-32:]
    def __call__(self, text):
        for line in text.split("\n"):
            line = line.strip()
            if not line: continue
            if line.endswith(":"):
                self.label(line[:-1]); continue
            if line.startswith(";") or line.startswith("."):
                self.raw(line); continue
            ins = Ins(line)
            touched = set(ins.rd) | set(ins.wr)
            last = -1
            for i, d in enumerate(self.lgkm):
                if d & touched: last = i
            if last >= 0:
                n = len(self.lgkm) - 1 - last
                self.wait_lgkm(n)
            if ins.kind in ("dsr", "dsw") and len(self.lgkm) >= 15:
                self.wait_lgkm(14)
            if ins.op == "s_waitcnt":
                m = re.search(r"lgkmcnt\((\d+)\)", line)
                if m:
                    n = int(m.group(1))
                    if n < len(self.lgkm): self.lgkm = self.lgkm[len(self.lgkm) - n:] if n else []
            self._emit(ins)
            if ins.kind == "dsr": self.lgkm.append(set(ins.wr))
            elif ins.kind == "dsw": self.lgkm.append(set())
    def wait_lgkm(self, n):
        n = min(n, 15)
        if n >= len(self.lgkm): return
        self.lgkm = self.lgkm[len(self.lgkm) - n:] if n else []
        self._emit(Ins(f"s_waitcnt lgkmcnt({n})"))
    def fence(self, states=16):
        self(f"s_nop {states-1}")
    def text(self):
        L = []
        for o in self.out:
            if isinstance(o, Ins): L.append("    " + o.text)
            else: L.append(o)
        return "\n".join(L) + "\n"
```

```python
import sys, math, struct
from asmlib import *
NAME = "concat_heads__gqa_block_cached__mha_block_cached__near_ridge"
STAMP_OFF = 200 << 20
SLOT = 40960
NS = 4
PART = 73728

def f32bits(x):
    return struct.unpack("<I", struct.pack("<f", x))[0]

class Cfg:
    kvpol = " nt"
    wpol = ""
    stamps = False
    xtouch = True
    codepf = True
    def __init__(self, **kw):
        for k, v in kw.items():
            assert hasattr(self, k), k
            setattr(self, k, v)

HDR = open("cdna_kernels/" + NAME + ".s.ref").read().split("; Override launch")[0]

S_BR, S_HP, S_B, S_W = 5, 6, 7, 36
SRD_X, SRD_WQ, SRD_K, SRD_V, SRD_WO = 8, 12, 16, 20, 24
SRD_PW, SRD_PR, SRD_OUT = 60, 64, 68
S_C = 72
STAMP0 = 80

NW, NK, NV, NO = 9, 8, 8, 9
G_K, G_V, G_O = NW, NW + NK, NW + NK + NV
NG = NW + NK + NV + NO
RPOS = [-5, -5, -4, -3, -2, -1, 0, 1, 2, 2, 3, 4, 5, 6, 7, 8]

def gen(cfg):
    a = Stream()
    a.raw(HDR.rstrip())
    a.raw("; @launch grid=(256,1,1) block=(512,1,1) lds=163840")
    a.raw('.amdgcn_target "amdgcn-amd-amdhsa--gfx950"')
    a.raw(".text")
    a.raw(f".globl {NAME}_kernel")
    a.raw(".p2align 8")
    a.raw(f".type {NAME}_kernel,@function")
    a.label(f"{NAME}_kernel")
    nst = [0]
    def stamp():
        if cfg.stamps:
            i = nst[0]; nst[0] += 1
            a(f"s_memrealtime s[{STAMP0+2*i}:{STAMP0+2*i+1}]")
            a("s_waitcnt lgkmcnt(0)")
    a("s_cmp_ge_u32 s2, 256")
    a("s_cbranch_scc1 L_end")
    stamp()
    a(f"""
    s_lshr_b32 s4, s2, 3
    s_lshr_b32 s{S_BR}, s4, 4
    s_xor_b32 s{S_BR}, s{S_BR}, 1
    s_mul_i32 s38, s{S_BR}, 40
    s_add_u32 s46, s0, s38
    s_addc_u32 s47, s1, 0
    s_load_dwordx8 s[48:55], s[46:47], 0
    s_load_dwordx2 s[56:57], s[46:47], 32
    s_load_dwordx4 s[40:43], s[0:1], 80
    s_load_dwordx2 s[44:45], s[0:1], 96
    v_lshrrev_b32 v1, 6, v0
    s_and_b32 s3, s2, 7
    s_and_b32 s{S_HP}, s4, 1
    v_readfirstlane_b32 s{S_W}, v1
    s_lshl_b32 s3, s3, 1
    s_add_u32 s{S_HP}, s{S_HP}, s3
    s_lshr_b32 s{S_B}, s4, 1
    s_and_b32 s{S_B}, s{S_B}, 7
    v_and_b32 v1, 63, v0
    s_cmp_ge_u32 s{S_W}, 4
    s_cbranch_scc1 L_loader
    """)
    compute(a, cfg, stamp)
    a("s_branch L_final")
    a.label("L_loader")
    a.hist = []; a.lgkm = []
    loader(a, cfg)
    a.label("L_final")
    a.hist = []; a.lgkm = []
    final(a, cfg, stamp, nst)
    a.label("L_end")
    a("s_endpgm")
    a.label("L_codeend")
    a.raw('.section .rodata,"a"')
    a.raw(".p2align 6")
    a.raw(f".amdhsa_kernel {NAME}_kernel")
    a.raw("  .amdhsa_next_free_vgpr 256")
    a.raw("  .amdhsa_next_free_sgpr 102")
    a.raw("  .amdhsa_accum_offset 256")
    a.raw("  .amdhsa_group_segment_fixed_size 0")
    a.raw("  .amdhsa_kernarg_size 104")
    a.raw("  .amdhsa_user_sgpr_count 2")
    a.raw("  .amdhsa_user_sgpr_kernarg_segment_ptr 1")
    a.raw("  .amdhsa_system_sgpr_workgroup_id_x 1")
    a.raw(".end_amdhsa_kernel")
    return a.text(), nst[0], a.npad

def ws_srds(a):
    a(f"""
    s_lshl_b32 s58, s{S_BR}, 3
    s_add_u32 s58, s58, s{S_B}
    s_mul_i32 s59, s58, {16*PART}
    s_add_u32 s{SRD_PR}, s44, s59
    s_addc_u32 s{SRD_PR+1}, s45, 0
    s_mov_b32 s{SRD_PR+2}, {16*PART}
    s_mov_b32 s{SRD_PR+3}, 0x20000
    s_mul_i32 s59, s{S_HP}, {PART}
    s_add_u32 s{SRD_PW}, s{SRD_PR}, s59
    s_addc_u32 s{SRD_PW+1}, s{SRD_PR+1}, 0
    s_mov_b32 s{SRD_PW+2}, {PART}
    s_mov_b32 s{SRD_PW+3}, 0x20000
    s_mov_b32 s{SRD_OUT}, s40
    s_mov_b32 s{SRD_OUT+1}, s41
    s_mov_b32 s{SRD_OUT+2}, {8*64*1152*2}
    s_mov_b32 s{SRD_OUT+3}, 0x20000
    s_lshl_b32 s39, s58, 4
    """)

cW, cX, cK, cV, cO, cEw, cEr = 2, 3, 4, 5, 6, 7, 8
vM, vL0, vL1, vMC = 9, 10, 11, 12
vINV = 14
vLN16 = 13
AD = 16
TMP = 24
FR = 32
XF = 64
QF = 64
SA = 96
OA = 64
SP = 128
QA = 128
OF = 128
OW = 192
PA = 192
PK = 224

def vr(b, n): return f"v[{b}:{b+n-1}]"

def compute(a, cfg, stamp):
    a(f"""
    s_lshr_b32 s37, s{S_W}, 1
    s_and_b32 s38, s{S_W}, 1
    v_lshrrev_b32 v24, 5, v1
    v_bfe_u32 v25, v1, 4, 1
    v_bfe_u32 v26, v1, 2, 2
    v_and_b32 v27, 1, v1
    v_bfe_u32 v28, v1, 1, 1
    v_lshlrev_b32 v29, 5, v25
    v_lshl_add_u32 v30, v27, 4, v29
    v_lshl_add_u32 v30, v28, 3, v30
    v_lshl_add_u32 v31, v28, 4, v29
    v_lshl_add_u32 v31, v27, 3, v31
    """)
    a(f"""
    v_lshlrev_b32 v{cW}, 12, v24
    v_mul_u32_u24 v29, 576, v26
    v_add3_u32 v{cW}, v{cW}, v29, v30
    s_lshl_b32 s58, s37, 8
    v_add_u32 v{cW}, s58, v{cW}
    v_and_b32 v29, 31, v1
    v_bfe_u32 v27, v1, 1, 3
    v_xor_b32 v27, v27, v24
    v_lshlrev_b32 v27, 4, v27
    v_lshl_add_u32 v{cX}, v29, 7, v27
    s_lshl_b32 s58, s38, 12
    s_add_u32 s58, s58, 32768
    v_add_u32 v{cX}, s58, v{cX}
    s_lshl_b32 s58, s37, 14
    s_mul_i32 s58, s58, s{S_BR}
    v_and_b32 v27, 15, v1
    v_xor_b32 v27, v27, v24
    v_lshlrev_b32 v27, 4, v27
    v_lshl_add_u32 v{cK}, v29, 8, v27
    v_add_u32 v{cK}, s58, v{cK}
    v_lshlrev_b32 v{cV}, 10, v24
    v_mul_u32_u24 v29, 320, v26
    v_add3_u32 v{cV}, v{cV}, v29, v31
    v_add_u32 v{cV}, s58, v{cV}
    v_lshlrev_b32 v{cO}, 9, v24
    v_lshl_add_u32 v{cO}, v26, 7, v{cO}
    v_lshrrev_b32 v27, 1, v26
    v_xor_b32 v27, s37, v27
    v_lshl_add_u32 v{cO}, v27, 6, v{cO}
    v_add_u32 v{cO}, v{cO}, v30
    v_lshlrev_b32 v{vLN16}, 4, v1
    s_mul_i32 s58, s{S_W}, {SLOT}
    s_add_u32 s58, s58, 32768
    v_add_u32 v{cEw}, s58, v{vLN16}
    s_mul_i32 s58, s38, {SLOT}
    s_add_u32 s58, s58, 32768
    v_add_u32 v{cEr}, s58, v{vLN16}
    v_mov_b32 v{vM}, 0xff800000
    v_mov_b32 v{vL0}, 0
    v_mov_b32 v{vL1}, 0
    s_mov_b32 s{S_C}, {f32bits((128 ** -0.5) * math.log2(math.e)):#x}
    s_waitcnt lgkmcnt(0)
    """)
    ws_srds(a)
    a(f"""
    s_mov_b32 s74, s{S_B}
    s_lshl_b32 s75, s{S_W}, 11
    """)

    NM = NG * 16
    post = [[] for _ in range(NM)]
    pre = []
    bubble = [[] for _ in range(NM)]
    mf = [None] * NM
    def put(pos, items):
        (pre if pos < 0 else post[pos]).extend(items)

    def addr_update(g):
        base = (g % NS) * SLOT
        L = []
        def base_add(dst, c):
            if base: L.append(f"v_add_u32 v{dst}, {base}, v{c}")
            else: L.append(f"v_mov_b32 v{dst}, v{c}")
        if g < G_K:
            base_add(AD, cW)
            for cb in range(1, 4): L.append(f"v_xor_b32 v{AD+cb}, {cb<<6}, v{AD}")
            base_add(AD + 4, cX)
            for t in range(1, 4): L.append(f"v_xor_b32 v{AD+4+t}, {t<<5}, v{AD+4}")
        elif g < G_V:
            base_add(AD, cK)
            for t in range(1, 8): L.append(f"v_xor_b32 v{AD+t}, {t<<5}, v{AD}")
        elif g < G_O:
            base_add(AD, cV)
            for db in range(1, 4): L.append(f"v_xor_b32 v{AD+db}, {db<<6}, v{AD}")
        else:
            base_add(AD, cO)
        return L

    for g in range(NG):
        b0 = g * 16
        au = addr_update(g)
        if g == 0:
            put(-1, au)
        else:
            h = (len(au) + 1) // 2
            put(b0 - 7, au[:h]); put(b0 - 6, au[h:])
        put(b0 - 5, ["@bar"])
        for f in range(16):
            buf = FR + 4 * (f % 8)
            rd = []
            if g < G_K:
                t, cb = divmod(f, 4)
                xb = XF + 4 * ((g * 4 + t) % 3)
                if cb == 0:
                    rd.append(f"ds_read_b128 {vr(xb,4)}, v{AD+4+t}")
                for u in range(2):
                    rd.append(f"ds_read_b64_tr_b16 {vr(buf+2*u,2)}, v{AD+cb} offset:{t*8192+u*2048}")
                acc = QA + 16 * cb
                c = "0" if (g == 0 and t == 0) else vr(acc, 16)
                mf[b0 + f] = f"v_mfma_f32_32x32x16_bf16 {vr(acc,16)}, {vr(buf,4)}, {vr(xb,4)}, {c}"
            elif g < G_V:
                kb, t = divmod(f, 8)
                rd.append(f"ds_read_b128 {vr(buf,4)}, v{AD+t} offset:{kb*8192}")
                acc = SA + 16 * kb
                c = "0" if t == 0 else vr(acc, 16)
                mf[b0 + f] = f"v_mfma_f32_32x32x16_bf16 {vr(acc,16)}, {vr(buf,4)}, {vr(QF+4*t,4)}, {c}"
            elif g < G_O:
                kt, db = divmod(f, 4)
                s = g - G_V
                for u in range(2):
                    rd.append(f"ds_read_b64_tr_b16 {vr(buf+2*u,2)}, v{AD+db} offset:{kt*4096+u*2048}")
                acc = OA + 16 * db
                c = "0" if (s == 0 and kt == 0) else vr(acc, 16)
                mf[b0 + f] = f"v_mfma_f32_32x32x16_bf16 {vr(acc,16)}, {vr(buf,4)}, {vr(SP+16*s+4*kt,4)}, {c}"
            else:
                ks = f
                for u in range(2):
                    rd.append(f"ds_read_b64_tr_b16 {vr(buf+2*u,2)}, v{AD} offset:{ks*2048+u*1024}")
                acc = PA + 16 * ((g - G_O) & 1)
                c = "0" if ks == 0 else vr(acc, 16)
                mf[b0 + f] = f"v_mfma_f32_32x32x16_bf16 {vr(acc,16)}, {vr(buf,4)}, {vr(OF+4*ks,4)}, {c}"
            put(b0 + RPOS[f], rd)

    def spread(items, p0, p1):
        n = p1 - p0 + 1
        for i, it in enumerate(items):
            post[p0 + i * n // len(items)].append(it)

    L = ["@stamp"]
    for cb in range(4):
        for p in range(8):
            L.append(f"v_cvt_pk_bf16_f32 v{QF+8*cb+p}, v{QA+16*cb+2*p}, v{QA+16*cb+2*p+1}")
    bubble[G_K * 16 - 1] = L

    def sproc(blk):
        acc = SA + 16 * (blk & 1)
        L = []
        for p in range(8):
            L.append(f"v_max3_f32 v{vM}, v{acc+2*p}, v{acc+2*p+1}, v{vM}")
            L.append(f"v_cvt_pk_bf16_f32 v{SP+8*blk+p}, v{acc+2*p}, v{acc+2*p+1}")
        return L
    for s in range(NK):
        b0 = (G_K + s) * 16
        spread(sproc(2 * s), b0 + 11, b0 + 15)
        if s + 1 < NK:
            spread(sproc(2 * s + 1), b0 + 16 + 2, b0 + 16 + 7)

    def pexp(i, k):
        t0 = TMP + 2 * (k % 4); t1 = t0 + 1
        r = SP + i
        return [f"v_lshlrev_b32 v{t0}, 16, v{r}",
                f"v_and_b32 v{t1}, 0xffff0000, v{r}",
                f"v_fma_f32 v{t0}, v{t0}, s{S_C}, -v{vMC}",
                f"v_fma_f32 v{t1}, v{t1}, s{S_C}, -v{vMC}",
                f"v_exp_f32 v{t0}, v{t0}",
                f"v_exp_f32 v{t1}, v{t1}",
                f"v_add_f32 v{vL0}, v{vL0}, v{t0}",
                f"v_add_f32 v{vL1}, v{vL1}, v{t1}",
                f"v_cvt_pk_bf16_f32 v{r}, v{t0}, v{t1}"]
    L = ["@stamp"] + sproc(2 * NK - 1)
    L += [f"v_mov_b32 v{TMP}, v{vM}",
          f"v_permlane32_swap_b32 v{TMP}, v{vM}",
          f"v_max_f32 v{vM}, v{TMP}, v{vM}",
          f"v_mul_f32 v{vMC}, s{S_C}, v{vM}"]
    for i in range(16): L += pexp(i, i)
    bubble[G_V * 16 - 1] = L
    for s in range(NV - 1):
        b0 = (G_V + s) * 16
        for i in range(16):
            post[b0 + i] += pexp(16 * (s + 1) + i, i)
    b0 = (G_O - 1) * 16
    post[b0 + 1] += [f"v_add_f32 v{vL0}, v{vL0}, v{vL1}", f"v_mov_b32 v{vL1}, v{vL0}"]
    post[b0 + 2] += [f"v_permlane32_swap_b32 v{vL0}, v{vL1}"]
    post[b0 + 3] += [f"v_add_f32 v{vL0}, v{vL0}, v{vL1}"]
    post[b0 + 4] += [f"v_rcp_f32 v{vINV}, v{vL0}"]
    post[b0 + 5] += [f"v_mov_b32 v{vINV+1}, v{vINV}"]
    L = ["@stamp"]
    for db in range(4):
        for p in range(8):
            r = OA + 16 * db + 2 * p
            L.append(f"v_pk_mul_f32 {vr(r,2)}, {vr(r,2)}, {vr(vINV,2)}")
        for p in range(8):
            r = OA + 16 * db + 2 * p
            L.append(f"v_cvt_pk_bf16_f32 v{OW+8*db+p}, v{r}, v{r+1}")
        for hf in range(2):
            L.append(f"ds_write_b128 v{cEw}, {vr(OW+8*db+4*hf,4)} offset:{(2*db+hf)*1024}")
    L.append(f"v_add_u32 v{TMP}, {2*SLOT}, v{cEr}")
    L.append("@bar")
    for hd in range(2):
        for i in range(8):
            L.append(f"ds_read_b128 {vr(OF+32*hd+4*i,4)}, v{cEr if hd == 0 else TMP} offset:{i*1024}")
    bubble[G_O * 16 - 1] = L

    def oproc(j):
        acc = PA + 16 * (j & 1); pk = PK + 8 * (j & 1)
        L = [f"s_lshl_b32 s73, s74, 13", "s_add_u32 s73, s73, s75",
             "s_add_u32 s74, s74, 1", "s_cmp_eq_u32 s74, 9", "s_cselect_b32 s74, 0, s74"]
        for p in range(8):
            L.append(f"v_cvt_pk_bf16_f32 v{pk+p}, v{acc+2*p}, v{acc+2*p+1}")
            if p % 4 == 3:
                i = p // 4
                L.append(f"buffer_store_dwordx4 {vr(pk+4*i,4)}, v{vLN16}, s[{SRD_PW}:{SRD_PW+3}], s73 offen offset:{i*1024} sc1")
        return L
    for j in range(NO - 1):
        b0 = (G_O + j + 1) * 16
        spread(oproc(j), b0 + 2, b0 + 8)
    bubble[NM - 1] = ["@stamp"] + oproc(NO - 1)

    def emit(items):
        for it in items:
            if it == "@bar":
                a("s_waitcnt lgkmcnt(0)")
                a("s_barrier")
            elif it == "@stamp":
                stamp()
            else:
                a(it)
    emit(pre)
    for i in range(NM):
        if cfg.stamps and i == 0: stamp()
        a(mf[i])
        emit(post[i])
        emit(bubble[i])
    a("s_waitcnt vmcnt(0)")

def loader(a, cfg):
    LW = 37
    a(f"""
    s_sub_u32 s{LW}, s{S_W}, 4
    v_lshrrev_b32 v20, 5, v1
    v_and_b32 v21, 31, v1
    v_lshrrev_b32 v22, 3, v1
    v_lshrrev_b32 v23, 4, v1
    v_and_b32 v24, 7, v1
    v_and_b32 v25, 15, v1
    """)
    for m in range(4):
        a(f"""
        v_add_u32 v26, {2*m}, v20
        v_and_b32 v27, 3, v26
        v_lshlrev_b32 v27, 2, v27
        v_xor_b32 v27, v27, v21
        v_lshlrev_b32 v27, 4, v27
        v_lshl_add_u32 v{4+m}, v26, 13, v27
        """)
        if m: a(f"v_subrev_u32 v{4+m}, {m*1024}, v{4+m}")
    for m in range(2):
        a(f"""
        v_add_u32 v26, {8*m}, v22
        v_add_u32 v27, {4*m}, v23
        v_xor_b32 v27, v27, v24
        v_lshlrev_b32 v27, 4, v27
        v_mul_u32_u24 v26, 1152, v26
        v_add_u32 v{8+m}, v26, v27
        """)
        if m: a(f"v_subrev_u32 v{8+m}, {m*1024}, v{8+m}")
    a("s_waitcnt lgkmcnt(0)")
    def srd(d, p, off, size):
        a(f"s_add_u32 s{d}, s{p}, s{off}")
        a(f"s_addc_u32 s{d+1}, s{p+1}, 0")
        a(f"s_mov_b32 s{d+2}, {size}")
        a(f"s_mov_b32 s{d+3}, 0x20000")
    a(f"s_mul_i32 s38, s{S_B}, 73728"); srd(SRD_X, 48, 38, 73728)
    a(f"s_lshl_b32 s38, s{S_HP}, 9"); srd(SRD_WQ, 54, 38, 575 * 8192 + 512)
    a(f"""
    s_lshl_b32 s76, s{LW}, 12
    s_lshl_b32 s77, s{LW}, 16
    s_lshl_b32 s78, s{LW}, 11
    s_add_u32 s78, s78, 32768
    s_mul_i32 s79, s{LW}, {16*1152}
    s_mov_b32 s74, s{S_B}
    """)
    wp = cfg.wpol; kp = cfg.kvpol
    def issueW(g):
        base = (g % NS) * SLOT
        a(f"s_lshl_b32 s58, s74, 19")
        a(f"s_add_u32 m0, s76, {base}")
        a(f"s_add_u32 s58, s58, s77")
        for m in range(4):
            a(f"buffer_load_dwordx4 v{4+m}, s[{SRD_WQ}:{SRD_WQ+3}], s58 offen offset:{m*1024}{wp} lds")
        a(f"s_add_u32 m0, s76, {base+16384}")
        a(f"s_add_u32 s58, s58, {32*8192}")
        for m in range(4):
            a(f"buffer_load_dwordx4 v{4+m}, s[{SRD_WQ}:{SRD_WQ+3}], s58 offen offset:{m*1024}{wp} lds")
        a(f"s_lshl_b32 s58, s74, 7")
        a(f"s_add_u32 m0, s78, {base}")
        a(f"s_add_u32 s58, s58, s79")
        for m in range(2):
            a(f"buffer_load_dwordx4 v{8+m}, s[{SRD_X}:{SRD_X+3}], s58 offen offset:{m*1024}{wp} lds")
        a("s_add_u32 s74, s74, 1")
        a("s_cmp_eq_u32 s74, 9")
        a("s_cselect_b32 s74, 0, s74")
    issueW(0)
    extra = 0
    if cfg.xtouch:
        a(f"""
        s_and_b32 s58, s{S_HP}, 1
        s_mul_i32 s58, s58, {288*128}
        s_mul_i32 s59, s{LW}, {72*128}
        s_add_u32 s58, s58, s59
        v_lshlrev_b32 v26, 7, v1
        v_lshrrev_b32 v27, 3, v1
        v_lshlrev_b32 v27, 7, v27
        buffer_load_dword v28, v26, s[{SRD_X}:{SRD_X+3}], s58 offen{wp}
        s_add_u32 s58, s58, 8192
        buffer_load_dword v29, v27, s[{SRD_X}:{SRD_X+3}], s58 offen{wp}
        """)
        extra += 2
    if cfg.codepf:
        a(f"""
        s_getpc_b64 s[58:59]
        L_pc:
        s_lshr_b32 s38, s2, 3
        s_lshl_b32 s38, s38, 2
        s_add_u32 s38, s38, s{LW}
        s_lshl_b32 s38, s38, 9
        s_min_u32 s38, s38, L_codeend-{NAME}_kernel-512
        s_sub_u32 s58, s58, L_pc-{NAME}_kernel
        s_subb_u32 s59, s59, 0
        v_lshlrev_b32 v26, 3, v1
        v_add_u32 v26, s38, v26
        global_load_dwordx2 v[30:31], v26, s[58:59]
        """)
        extra += 1
    issueW(1)
    for m in range(4):
        a(f"""
        v_add_u32 v26, {4*m}, v23
        v_xor_b32 v26, v26, v25
        v_lshlrev_b32 v26, 4, v26
        v_lshl_add_u32 v{10+m}, v23, 8, v26
        """)
    a(f"""
    v_lshlrev_b32 v26, 2, v23
    v_xor_b32 v26, v26, v25
    v_lshlrev_b32 v26, 4, v26
    v_lshl_add_u32 v14, v23, 8, v26
    v_and_b32 v26, 1, v23
    v_lshlrev_b32 v26, 2, v26
    v_xor_b32 v26, v26, v24
    v_lshlrev_b32 v26, 4, v26
    v_mul_u32_u24 v27, 1152, v22
    v_add_u32 v16, v26, v27
    """)
    for m in range(1, 4):
        a(f"v_add_u32 v{16+m}, {m*(8*1152-1024)}, v16")
    a(f"""
    s_lshl_b32 s38, s{S_B}, 4
    s_add_u32 s38, s38, s{S_HP}
    s_lshl_b32 s38, s38, s{S_BR}
    s_lshl_b32 s38, s38, 17
    s_lshl_b32 s59, 131072, s{S_BR}
    """)
    srd(SRD_K, 50, 38, "s59"); srd(SRD_V, 52, 38, "s59")
    a(f"s_mul_i32 s38, s{S_HP}, 294912"); srd(SRD_WO, 56, 38, 294912)
    issueW(2)
    ws_srds(a)
    a(f"s_mul_i32 s75, s{LW}, {32*1152}")

    def issueKV(g, isB):
        base = (g % NS) * SLOT
        isK = g < G_V
        s = g - (G_K if isK else G_V)
        srdn = SRD_K if isK else SRD_V
        for hd in range(2 if isB else 1):
            a(f"s_add_u32 m0, s76, {base + hd*16384}")
            a(f"s_add_u32 s58, s76, {s*16384 + hd*131072}")
            for m in range(4):
                vo = 10 + m if isK else 14
                a(f"buffer_load_dwordx4 v{vo}, s[{srdn}:{srdn+3}], s58 offen offset:{m*1024}{kp} lds")
    def issueO(g):
        base = (g % NS) * SLOT
        a(f"s_lshl_b32 s58, s74, 7")
        a(f"s_add_u32 m0, s76, {base}")
        a(f"s_add_u32 s58, s58, s75")
        for m in range(4):
            a(f"buffer_load_dwordx4 v{16+m}, s[{SRD_WO}:{SRD_WO+3}], s58 offen offset:{m*1024}{wp} lds")
        a(f"s_add_u32 m0, s76, {base+16384}")
        a(f"s_add_u32 s58, s58, {128*1152}")
        for m in range(4):
            a(f"buffer_load_dwordx4 v{16+m}, s[{SRD_WO}:{SRD_WO+3}], s58 offen offset:{m*1024}{wp} lds")
        a("s_add_u32 s74, s74, 1")
        a("s_cmp_eq_u32 s74, 9")
        a("s_cselect_b32 s74, 0, s74")
    def cnt(g, isB):
        if g >= NG: return 0
        if g < G_K: return 10
        if g < G_O: return 8 if isB else 4
        return 8
    def stage(g, isB):
        n = cnt(g + 1, isB) + cnt(g + 2, isB)
        if g == 0: n += extra
        a(f"s_waitcnt vmcnt({n})")
        a("s_barrier")
        j = g + 3
        if j < G_K: issueW(j)
        elif j < G_O: issueKV(j, isB)
        elif j < NG: issueO(j)
        if g == G_O: a("s_barrier")
    g0 = G_K - 3
    gend = G_O - 1
    for g in range(0, g0): stage(g, True)
    a(f"s_cmp_eq_u32 s{S_BR}, 0")
    a("s_cbranch_scc1 L_ldA")
    for g in range(g0, gend): stage(g, True)
    a("s_branch L_ldO")
    a.label("L_ldA")
    for g in range(g0, gend): stage(g, False)
    a.label("L_ldO")
    for g in range(gend, NG): stage(g, True)

def final(a, cfg, stamp, nst):
    a(f"""
    s_mul_i32 s58, s{S_HP}, 288
    v_add_u32 v2, s58, v0
    v_lshlrev_b32 v3, 4, v2
    v_and_b32 v4, 31, v2
    v_bfe_u32 v5, v2, 7, 1
    v_lshl_add_u32 v4, v5, 5, v4
    s_lshl_b32 s58, s{S_B}, 6
    v_add_u32 v4, s58, v4
    v_mul_u32_u24 v4, 2304, v4
    v_lshrrev_b32 v5, 9, v2
    v_lshl_add_u32 v4, v5, 7, v4
    v_bfe_u32 v5, v2, 8, 1
    v_lshl_add_u32 v4, v5, 6, v4
    v_bfe_u32 v5, v2, 6, 1
    v_lshl_add_u32 v4, v5, 5, v4
    v_bfe_u32 v5, v2, 5, 1
    v_lshl_add_u32 v4, v5, 4, v4
    s_mul_i32 s58, s{S_BR}, 1152
    v_add_u32 v4, s58, v4
    s_barrier
    s_cmp_lg_u32 s{S_W}, 0
    s_cbranch_scc1 L_polled
    v_mov_b32 v6, s39
    v_mov_b32 v7, 1
    s_mov_b64 exec, 1
    global_atomic_add v6, v7, s[42:43] sc1
    s_mov_b32 s58, 0
    L_poll:
    global_load_dword v8, v6, s[42:43] sc1
    s_add_u32 s58, s58, 1
    s_waitcnt vmcnt(0)
    v_readfirstlane_b32 s59, v8
    s_cmp_ge_u32 s58, 0x10000
    s_cbranch_scc1 L_pollx
    s_cmp_ge_u32 s59, 16
    s_cbranch_scc1 L_pollx
    s_sleep 1
    s_branch L_poll
    L_pollx:
    s_mov_b64 exec, -1
    L_polled:
    s_barrier
    """)
    stamp()
    a(f"""
    v_cmp_gt_u32 vcc, 288, v0
    s_and_saveexec_b64 s[58:59], vcc
    s_cbranch_execz L_done
    s_mov_b32 s38, 0
    """)
    for m in range(16):
        a(f"buffer_load_dwordx4 v[{128+4*m}:{131+4*m}], v3, s[{SRD_PR}:{SRD_PR+3}], s38 offen sc1")
        if m < 15: a(f"s_add_u32 s38, s38, {PART}")
    for m in range(16):
        a(f"s_waitcnt vmcnt({15-m})")
        for d in range(4):
            r = 128 + 4 * m + d
            if m == 0:
                a(f"v_lshlrev_b32 v{16+2*d}, 16, v{r}")
                a(f"v_and_b32 v{17+2*d}, 0xffff0000, v{r}")
            else:
                a(f"v_lshlrev_b32 v{24+2*d}, 16, v{r}")
                a(f"v_and_b32 v{25+2*d}, 0xffff0000, v{r}")
                a(f"v_pk_add_f32 v[{16+2*d}:{17+2*d}], v[{16+2*d}:{17+2*d}], v[{24+2*d}:{25+2*d}]")
    for d in range(4):
        a(f"v_cvt_pk_bf16_f32 v{32+d}, v{16+2*d}, v{17+2*d}")
    a(f"buffer_store_dwordx4 v[32:35], v4, s[{SRD_OUT}:{SRD_OUT+3}], 0 offen")
    if cfg.stamps:
        a("s_waitcnt vmcnt(0)")
        stamp()
        n = nst[0]
        a(f"""
        s_cmp_lg_u32 s{S_W}, 0
        s_cbranch_scc1 L_done
        s_mov_b64 exec, 1
        s_add_u32 s44, s44, {STAMP_OFF}
        s_addc_u32 s45, s45, 0
        s_mul_i32 s38, s2, {8*n}
        v_mov_b32 v3, s38
        """)
        for j in range(n):
            a(f"v_mov_b32 v4, s{STAMP0+2*j}")
            a(f"v_mov_b32 v5, s{STAMP0+2*j+1}")
            a(f"global_store_dwordx2 v3, v[4:5], s[44:45] offset:{8*j}")
            a("s_nop 1")
    a.label("L_done")

if __name__ == "__main__":
    out = sys.argv[1]
    kw = {}
    for arg in sys.argv[2:]:
        k, v = arg.split("=", 1)
        kw[k] = eval(v)
    txt, ns, npad = gen(Cfg(**kw))
    open(out, "w").write(txt)
    print(out, "lines", txt.count("\n"), "stamps", ns, "nop-pad states", npad)
```

```python
import sys, math, struct
from asmlib import *
NAME = "concat_heads__gqa_block_cached__mha_block_cached__near_ridge"
STAMP_OFF = 200 << 20
SLOT = 40960
NS = 4
PART = 73728

def f32bits(x):
    return struct.unpack("<I", struct.pack("<f", x))[0]

class Cfg:
    kvpol = " nt"
    wpol = ""
    stamps = False
    xtouch = True
    codepf = True
    lstamps = False
    dbgstamps = False
    nostore = False
    stpol = " sc1"
    def __init__(self, **kw):
        for k, v in kw.items():
            assert hasattr(self, k), k
            setattr(self, k, v)

HDR = open("cdna_kernels/" + NAME + ".s.ref").read().split("; Override launch")[0]

S_BR, S_HP, S_B, S_W = 5, 6, 7, 36
SRD_X, SRD_WQ, SRD_K, SRD_V, SRD_WO = 8, 12, 16, 20, 24
SRD_PW, SRD_PR, SRD_OUT = 60, 64, 68
S_C = 72
STAMP0 = 80

NW, NK, NV, NO = 9, 8, 8, 9
G_K, G_V, G_O = NW, NW + NK, NW + NK + NV
NG = NW + NK + NV + NO
RPOS = [-5, -5, -4, -3, -2, -1, 0, 1, 2, 2, 3, 4, 5, 6, 7, 8]

def gen(cfg):
    a = Stream()
    a.raw(HDR.rstrip())
    a.raw("; @launch grid=(256,1,1) block=(512,1,1) lds=163840")
    a.raw('.amdgcn_target "amdgcn-amd-amdhsa--gfx950"')
    a.raw(".text")
    a.raw(f".globl {NAME}_kernel")
    a.raw(".p2align 8")
    a.raw(f".type {NAME}_kernel,@function")
    a.label(f"{NAME}_kernel")
    nst = [0]
    def stamp():
        if cfg.stamps:
            i = nst[0]; nst[0] += 1
            a(f"s_memrealtime s[{STAMP0+2*i}:{STAMP0+2*i+1}]")
            a("s_waitcnt lgkmcnt(0)")
    a("s_cmp_ge_u32 s2, 256")
    a("s_cbranch_scc1 L_end")
    stamp()
    a(f"""
    s_lshr_b32 s4, s2, 3
    s_lshr_b32 s{S_BR}, s4, 4
    s_xor_b32 s{S_BR}, s{S_BR}, 1
    s_mul_i32 s38, s{S_BR}, 40
    s_add_u32 s46, s0, s38
    s_addc_u32 s47, s1, 0
    s_load_dwordx8 s[48:55], s[46:47], 0
    s_load_dwordx2 s[56:57], s[46:47], 32
    s_load_dwordx4 s[40:43], s[0:1], 80
    s_load_dwordx2 s[44:45], s[0:1], 96
    v_lshrrev_b32 v1, 6, v0
    s_and_b32 s3, s2, 7
    s_and_b32 s{S_HP}, s4, 1
    v_readfirstlane_b32 s{S_W}, v1
    s_lshl_b32 s3, s3, 1
    s_add_u32 s{S_HP}, s{S_HP}, s3
    s_lshr_b32 s{S_B}, s4, 1
    s_and_b32 s{S_B}, s{S_B}, 7
    v_and_b32 v1, 63, v0
    s_cmp_ge_u32 s{S_W}, 4
    s_cbranch_scc1 L_loader
    """)
    compute(a, cfg, stamp)
    a("s_branch L_final")
    a.label("L_loader")
    a.hist = []; a.lgkm = []
    loader(a, cfg)
    a.label("L_final")
    a.hist = []; a.lgkm = []
    final(a, cfg, stamp, nst)
    a.label("L_end")
    a("s_endpgm")
    a.label("L_codeend")
    a.raw('.section .rodata,"a"')
    a.raw(".p2align 6")
    a.raw(f".amdhsa_kernel {NAME}_kernel")
    a.raw("  .amdhsa_next_free_vgpr 256")
    a.raw("  .amdhsa_next_free_sgpr 102")
    a.raw("  .amdhsa_accum_offset 256")
    a.raw("  .amdhsa_group_segment_fixed_size 0")
    a.raw("  .amdhsa_kernarg_size 104")
    a.raw("  .amdhsa_user_sgpr_count 2")
    a.raw("  .amdhsa_user_sgpr_kernarg_segment_ptr 1")
    a.raw("  .amdhsa_system_sgpr_workgroup_id_x 1")
    a.raw(".end_amdhsa_kernel")
    return a.text(), nst[0], a.npad

def ws_srds(a):
    a(f"""
    s_lshl_b32 s58, s{S_BR}, 3
    s_add_u32 s58, s58, s{S_B}
    s_mul_i32 s59, s58, {16*PART}
    s_add_u32 s{SRD_PR}, s44, s59
    s_addc_u32 s{SRD_PR+1}, s45, 0
    s_mov_b32 s{SRD_PR+2}, {16*PART}
    s_mov_b32 s{SRD_PR+3}, 0x20000
    s_mul_i32 s59, s{S_HP}, {PART}
    s_add_u32 s{SRD_PW}, s{SRD_PR}, s59
    s_addc_u32 s{SRD_PW+1}, s{SRD_PR+1}, 0
    s_mov_b32 s{SRD_PW+2}, {PART}
    s_mov_b32 s{SRD_PW+3}, 0x20000
    s_mov_b32 s{SRD_OUT}, s40
    s_mov_b32 s{SRD_OUT+1}, s41
    s_mov_b32 s{SRD_OUT+2}, {8*64*1152*2}
    s_mov_b32 s{SRD_OUT+3}, 0x20000
    s_lshl_b32 s39, s58, 4
    """)

cW, cX, cK, cV, cO, cEw, cEr = 2, 3, 4, 5, 6, 7, 8
vM, vL0, vL1, vMC = 9, 10, 11, 12
vINV = 14
vLN16 = 13
AD = 16
TMP = 24
FR = 32
XF = 64
QF = 64
SA = 96
OA = 64
SP = 128
QA = 128
OF = 128
OW = 192
PA = 192
PK = 224

def vr(b, n): return f"v[{b}:{b+n-1}]"

def compute(a, cfg, stamp):
    a(f"""
    s_lshr_b32 s37, s{S_W}, 1
    s_and_b32 s38, s{S_W}, 1
    v_lshrrev_b32 v24, 5, v1
    v_bfe_u32 v25, v1, 4, 1
    v_bfe_u32 v26, v1, 2, 2
    v_and_b32 v27, 1, v1
    v_bfe_u32 v28, v1, 1, 1
    v_lshlrev_b32 v29, 5, v25
    v_lshl_add_u32 v30, v27, 4, v29
    v_lshl_add_u32 v30, v28, 3, v30
    v_lshl_add_u32 v31, v28, 4, v29
    v_lshl_add_u32 v31, v27, 3, v31
    """)
    a(f"""
    v_lshlrev_b32 v{cW}, 12, v24
    v_mul_u32_u24 v29, 576, v26
    v_add3_u32 v{cW}, v{cW}, v29, v30
    s_lshl_b32 s58, s37, 8
    v_add_u32 v{cW}, s58, v{cW}
    v_and_b32 v29, 31, v1
    v_bfe_u32 v27, v1, 1, 3
    v_xor_b32 v27, v27, v24
    v_lshlrev_b32 v27, 4, v27
    v_lshl_add_u32 v{cX}, v29, 7, v27
    s_lshl_b32 s58, s38, 12
    s_add_u32 s58, s58, 32768
    v_add_u32 v{cX}, s58, v{cX}
    s_lshl_b32 s58, s37, 14
    s_mul_i32 s58, s58, s{S_BR}
    v_and_b32 v27, 15, v1
    v_xor_b32 v27, v27, v24
    v_lshlrev_b32 v27, 4, v27
    v_lshl_add_u32 v{cK}, v29, 8, v27
    v_add_u32 v{cK}, s58, v{cK}
    v_lshlrev_b32 v{cV}, 10, v24
    v_mul_u32_u24 v29, 320, v26
    v_add3_u32 v{cV}, v{cV}, v29, v31
    v_add_u32 v{cV}, s58, v{cV}
    v_lshlrev_b32 v{cO}, 9, v24
    v_lshl_add_u32 v{cO}, v26, 7, v{cO}
    v_lshrrev_b32 v27, 1, v26
    v_xor_b32 v27, s37, v27
    v_lshl_add_u32 v{cO}, v27, 6, v{cO}
    v_add_u32 v{cO}, v{cO}, v30
    v_lshlrev_b32 v{vLN16}, 4, v1
    s_mul_i32 s58, s{S_W}, {SLOT}
    s_add_u32 s58, s58, 32768
    v_add_u32 v{cEw}, s58, v{vLN16}
    s_mul_i32 s58, s38, {SLOT}
    s_add_u32 s58, s58, 32768
    v_add_u32 v{cEr}, s58, v{vLN16}
    v_mov_b32 v{vM}, 0xff800000
    v_mov_b32 v{vL0}, 0
    v_mov_b32 v{vL1}, 0
    s_mov_b32 s{S_C}, {f32bits((128 ** -0.5) * math.log2(math.e)):#x}
    s_waitcnt lgkmcnt(0)
    """)
    ws_srds(a)
    a(f"""
    s_mov_b32 s74, s{S_B}
    s_lshl_b32 s75, s{S_W}, 11
    """)

    NM = NG * 16
    post = [[] for _ in range(NM)]
    pre = []
    bubble = [[] for _ in range(NM)]
    mf = [None] * NM
    def put(pos, items):
        (pre if pos < 0 else post[pos]).extend(items)

    def addr_update(g):
        base = (g % NS) * SLOT
        L = []
        def base_add(dst, c):
            if base: L.append(f"v_add_u32 v{dst}, {base}, v{c}")
            else: L.append(f"v_mov_b32 v{dst}, v{c}")
        if g < G_K:
            base_add(AD, cW)
            for cb in range(1, 4): L.append(f"v_xor_b32 v{AD+cb}, {cb<<6}, v{AD}")
            base_add(AD + 4, cX)
            for t in range(1, 4): L.append(f"v_xor_b32 v{AD+4+t}, {t<<5}, v{AD+4}")
        elif g < G_V:
            base_add(AD, cK)
            for t in range(1, 8): L.append(f"v_xor_b32 v{AD+t}, {t<<5}, v{AD}")
        elif g < G_O:
            base_add(AD, cV)
            for db in range(1, 4): L.append(f"v_xor_b32 v{AD+db}, {db<<6}, v{AD}")
        else:
            base_add(AD, cO)
        return L

    for g in range(NG):
        b0 = g * 16
        au = addr_update(g)
        if g == 0:
            put(-1, au)
        else:
            h = (len(au) + 1) // 2
            put(b0 - 7, au[:h]); put(b0 - 6, au[h:])
        put(b0 - 5, ["@bar"])
        for f in range(16):
            buf = FR + 4 * (f % 8)
            rd = []
            if g < G_K:
                t, cb = divmod(f, 4)
                xb = XF + 4 * ((g * 4 + t) % 3)
                if cb == 0:
                    rd.append(f"ds_read_b128 {vr(xb,4)}, v{AD+4+t}")
                for u in range(2):
                    rd.append(f"ds_read_b64_tr_b16 {vr(buf+2*u,2)}, v{AD+cb} offset:{t*8192+u*2048}")
                acc = QA + 16 * cb
                c = "0" if (g == 0 and t == 0) else vr(acc, 16)
                mf[b0 + f] = f"v_mfma_f32_32x32x16_bf16 {vr(acc,16)}, {vr(buf,4)}, {vr(xb,4)}, {c}"
            elif g < G_V:
                kb, t = divmod(f, 8)
                rd.append(f"ds_read_b128 {vr(buf,4)}, v{AD+t} offset:{kb*8192}")
                acc = SA + 16 * kb
                c = "0" if t == 0 else vr(acc, 16)
                mf[b0 + f] = f"v_mfma_f32_32x32x16_bf16 {vr(acc,16)}, {vr(buf,4)}, {vr(QF+4*t,4)}, {c}"
            elif g < G_O:
                kt, db = divmod(f, 4)
                s = g - G_V
                for u in range(2):
                    rd.append(f"ds_read_b64_tr_b16 {vr(buf+2*u,2)}, v{AD+db} offset:{kt*4096+u*2048}")
                acc = OA + 16 * db
                c = "0" if (s == 0 and kt == 0) else vr(acc, 16)
                mf[b0 + f] = f"v_mfma_f32_32x32x16_bf16 {vr(acc,16)}, {vr(buf,4)}, {vr(SP+16*s+4*kt,4)}, {c}"
            else:
                ks = f
                for u in range(2):
                    rd.append(f"ds_read_b64_tr_b16 {vr(buf+2*u,2)}, v{AD} offset:{ks*2048+u*1024}")
                acc = PA + 16 * ((g - G_O) & 1)
                c = "0" if ks == 0 else vr(acc, 16)
                mf[b0 + f] = f"v_mfma_f32_32x32x16_bf16 {vr(acc,16)}, {vr(buf,4)}, {vr(OF+4*ks,4)}, {c}"
            put(b0 + RPOS[f], rd)

    def spread(items, p0, p1):
        n = p1 - p0 + 1
        for i, it in enumerate(items):
            post[p0 + i * n // len(items)].append(it)

    L = ["@stamp"]
    for cb in range(4):
        for p in range(8):
            L.append(f"v_cvt_pk_bf16_f32 v{QF+8*cb+p}, v{QA+16*cb+2*p}, v{QA+16*cb+2*p+1}")
    bubble[G_K * 16 - 1] = L

    def sproc(blk):
        acc = SA + 16 * (blk & 1)
        L = []
        for p in range(8):
            L.append(f"v_max3_f32 v{vM}, v{acc+2*p}, v{acc+2*p+1}, v{vM}")
            L.append(f"v_cvt_pk_bf16_f32 v{SP+8*blk+p}, v{acc+2*p}, v{acc+2*p+1}")
        return L
    for s in range(NK):
        b0 = (G_K + s) * 16
        spread(sproc(2 * s), b0 + 11, b0 + 15)
        if s + 1 < NK:
            spread(sproc(2 * s + 1), b0 + 16 + 2, b0 + 16 + 7)

    def pexp(i, k):
        t0 = TMP + 2 * (k % 4); t1 = t0 + 1
        r = SP + i
        return [f"v_lshlrev_b32 v{t0}, 16, v{r}",
                f"v_and_b32 v{t1}, 0xffff0000, v{r}",
                f"v_fma_f32 v{t0}, v{t0}, s{S_C}, -v{vMC}",
                f"v_fma_f32 v{t1}, v{t1}, s{S_C}, -v{vMC}",
                f"v_exp_f32 v{t0}, v{t0}",
                f"v_exp_f32 v{t1}, v{t1}",
                f"v_add_f32 v{vL0}, v{vL0}, v{t0}",
                f"v_add_f32 v{vL1}, v{vL1}, v{t1}",
                f"v_cvt_pk_bf16_f32 v{r}, v{t0}, v{t1}"]
    L = ["@stamp"] + sproc(2 * NK - 1)
    L += [f"v_mov_b32 v{TMP}, v{vM}",
          f"v_permlane32_swap_b32 v{TMP}, v{vM}",
          f"v_max_f32 v{vM}, v{TMP}, v{vM}",
          f"v_mul_f32 v{vMC}, s{S_C}, v{vM}"]
    for i in range(16): L += pexp(i, i)
    bubble[G_V * 16 - 1] = L
    for s in range(NV - 1):
        b0 = (G_V + s) * 16
        for i in range(16):
            post[b0 + i] += pexp(16 * (s + 1) + i, i)
    b0 = (G_O - 1) * 16
    post[b0 + 1] += [f"v_add_f32 v{vL0}, v{vL0}, v{vL1}", f"v_mov_b32 v{vL1}, v{vL0}"]
    post[b0 + 2] += [f"v_permlane32_swap_b32 v{vL0}, v{vL1}"]
    post[b0 + 3] += [f"v_add_f32 v{vL0}, v{vL0}, v{vL1}"]
    post[b0 + 4] += [f"v_rcp_f32 v{vINV}, v{vL0}"]
    post[b0 + 5] += [f"v_mov_b32 v{vINV+1}, v{vINV}"]
    L = ["@stamp"]
    for db in range(4):
        for p in range(8):
            r = OA + 16 * db + 2 * p
            L.append(f"v_pk_mul_f32 {vr(r,2)}, {vr(r,2)}, {vr(vINV,2)}")
        for p in range(8):
            r = OA + 16 * db + 2 * p
            L.append(f"v_cvt_pk_bf16_f32 v{OW+8*db+p}, v{r}, v{r+1}")
        for hf in range(2):
            L.append(f"ds_write_b128 v{cEw}, {vr(OW+8*db+4*hf,4)} offset:{(2*db+hf)*1024}")
    L.append(f"v_add_u32 v{TMP}, {2*SLOT}, v{cEr}")
    L.append("@bar")
    for hd in range(2):
        for i in range(8):
            L.append(f"ds_read_b128 {vr(OF+32*hd+4*i,4)}, v{cEr if hd == 0 else TMP} offset:{i*1024}")
    bubble[G_O * 16 - 1] = L

    def oproc(j):
        acc = PA + 16 * (j & 1); pk = PK + 8 * (j & 1)
        L = [f"s_lshl_b32 s73, s74, 13", "s_add_u32 s73, s73, s75",
             "s_add_u32 s74, s74, 1", "s_cmp_eq_u32 s74, 9", "s_cselect_b32 s74, 0, s74"]
        for p in range(8):
            L.append(f"v_cvt_pk_bf16_f32 v{pk+p}, v{acc+2*p}, v{acc+2*p+1}")
            if p % 4 == 3:
                i = p // 4
                if not cfg.nostore:
                    L.append(f"buffer_store_dwordx4 {vr(pk+4*i,4)}, v{vLN16}, s[{SRD_PW}:{SRD_PW+3}], s73 offen offset:{i*1024}{cfg.stpol}")
        return L
    for j in range(NO - 1):
        b0 = (G_O + j + 1) * 16
        spread(oproc(j), b0 + 2, b0 + 8)
    bubble[NM - 1] = ["@stamp"] + oproc(NO - 1)

    def emit(items):
        for it in items:
            if it == "@bar":
                a("s_waitcnt lgkmcnt(0)")
                a("s_barrier")
            elif it == "@stamp":
                stamp()
            else:
                a(it)
    emit(pre)
    for i in range(NM):
        if cfg.stamps and i == 0: stamp()
        a(mf[i])
        emit(post[i])
        emit(bubble[i])
    a("s_waitcnt vmcnt(0)")
    stamp()

def loader(a, cfg):
    LW = 37
    a(f"""
    s_sub_u32 s{LW}, s{S_W}, 4
    v_lshrrev_b32 v20, 5, v1
    v_and_b32 v21, 31, v1
    v_lshrrev_b32 v22, 3, v1
    v_lshrrev_b32 v23, 4, v1
    v_and_b32 v24, 7, v1
    v_and_b32 v25, 15, v1
    """)
    for m in range(4):
        a(f"""
        v_add_u32 v26, {2*m}, v20
        v_and_b32 v27, 3, v26
        v_lshlrev_b32 v27, 2, v27
        v_xor_b32 v27, v27, v21
        v_lshlrev_b32 v27, 4, v27
        v_lshl_add_u32 v{4+m}, v26, 13, v27
        """)
        if m: a(f"v_subrev_u32 v{4+m}, {m*1024}, v{4+m}")
    for m in range(2):
        a(f"""
        v_add_u32 v26, {8*m}, v22
        v_add_u32 v27, {4*m}, v23
        v_xor_b32 v27, v27, v24
        v_lshlrev_b32 v27, 4, v27
        v_mul_u32_u24 v26, 1152, v26
        v_add_u32 v{8+m}, v26, v27
        """)
        if m: a(f"v_subrev_u32 v{8+m}, {m*1024}, v{8+m}")
    a("s_waitcnt lgkmcnt(0)")
    def srd(d, p, off, size):
        a(f"s_add_u32 s{d}, s{p}, s{off}")
        a(f"s_addc_u32 s{d+1}, s{p+1}, 0")
        a(f"s_mov_b32 s{d+2}, {size}")
        a(f"s_mov_b32 s{d+3}, 0x20000")
    a(f"s_mul_i32 s38, s{S_B}, 73728"); srd(SRD_X, 48, 38, 73728)
    a(f"s_lshl_b32 s38, s{S_HP}, 9"); srd(SRD_WQ, 54, 38, 575 * 8192 + 512)
    a(f"""
    s_lshl_b32 s76, s{LW}, 12
    s_lshl_b32 s77, s{LW}, 16
    s_lshl_b32 s78, s{LW}, 11
    s_add_u32 s78, s78, 32768
    s_mul_i32 s79, s{LW}, {16*1152}
    s_mov_b32 s74, s{S_B}
    """)
    wp = cfg.wpol; kp = cfg.kvpol
    def issueW(g):
        base = (g % NS) * SLOT
        a(f"s_lshl_b32 s58, s74, 19")
        a(f"s_add_u32 m0, s76, {base}")
        a(f"s_add_u32 s58, s58, s77")
        for m in range(4):
            a(f"buffer_load_dwordx4 v{4+m}, s[{SRD_WQ}:{SRD_WQ+3}], s58 offen offset:{m*1024}{wp} lds")
        a(f"s_add_u32 m0, s76, {base+16384}")
        a(f"s_add_u32 s58, s58, {32*8192}")
        for m in range(4):
            a(f"buffer_load_dwordx4 v{4+m}, s[{SRD_WQ}:{SRD_WQ+3}], s58 offen offset:{m*1024}{wp} lds")
        a(f"s_lshl_b32 s58, s74, 7")
        a(f"s_add_u32 m0, s78, {base}")
        a(f"s_add_u32 s58, s58, s79")
        for m in range(2):
            a(f"buffer_load_dwordx4 v{8+m}, s[{SRD_X}:{SRD_X+3}], s58 offen offset:{m*1024}{wp} lds")
        a("s_add_u32 s74, s74, 1")
        a("s_cmp_eq_u32 s74, 9")
        a("s_cselect_b32 s74, 0, s74")
    issueW(0)
    extra = 0
    if cfg.xtouch:
        a(f"""
        s_and_b32 s58, s{S_HP}, 1
        s_mul_i32 s58, s58, {288*128}
        s_mul_i32 s59, s{LW}, {72*128}
        s_add_u32 s58, s58, s59
        v_lshlrev_b32 v26, 7, v1
        v_lshrrev_b32 v27, 3, v1
        v_lshlrev_b32 v27, 7, v27
        buffer_load_dword v28, v26, s[{SRD_X}:{SRD_X+3}], s58 offen{wp}
        s_add_u32 s58, s58, 8192
        buffer_load_dword v29, v27, s[{SRD_X}:{SRD_X+3}], s58 offen{wp}
        """)
        extra += 2
    if cfg.codepf:
        a(f"""
        s_getpc_b64 s[58:59]
        L_pc:
        s_lshr_b32 s38, s2, 3
        s_lshl_b32 s38, s38, 2
        s_add_u32 s38, s38, s{LW}
        s_lshl_b32 s38, s38, 9
        s_min_u32 s38, s38, L_codeend-{NAME}_kernel-512
        s_sub_u32 s58, s58, L_pc-{NAME}_kernel
        s_subb_u32 s59, s59, 0
        v_lshlrev_b32 v26, 3, v1
        v_add_u32 v26, s38, v26
        global_load_dwordx2 v[30:31], v26, s[58:59]
        """)
        extra += 1
    issueW(1)
    for m in range(4):
        a(f"""
        v_add_u32 v26, {4*m}, v23
        v_xor_b32 v26, v26, v25
        v_lshlrev_b32 v26, 4, v26
        v_lshl_add_u32 v{10+m}, v23, 8, v26
        """)
    a(f"""
    v_lshlrev_b32 v26, 2, v23
    v_xor_b32 v26, v26, v25
    v_lshlrev_b32 v26, 4, v26
    v_lshl_add_u32 v14, v23, 8, v26
    v_and_b32 v26, 1, v23
    v_lshlrev_b32 v26, 2, v26
    v_xor_b32 v26, v26, v24
    v_lshlrev_b32 v26, 4, v26
    v_mul_u32_u24 v27, 1152, v22
    v_add_u32 v16, v26, v27
    """)
    for m in range(1, 4):
        a(f"v_add_u32 v{16+m}, {m*(8*1152-1024)}, v16")
    a(f"""
    s_lshl_b32 s38, s{S_B}, 4
    s_add_u32 s38, s38, s{S_HP}
    s_lshl_b32 s38, s38, s{S_BR}
    s_lshl_b32 s38, s38, 17
    s_lshl_b32 s59, 131072, s{S_BR}
    """)
    srd(SRD_K, 50, 38, "s59"); srd(SRD_V, 52, 38, "s59")
    a(f"s_mul_i32 s38, s{S_HP}, 294912"); srd(SRD_WO, 56, 38, 294912)
    issueW(2)
    ws_srds(a)
    a(f"s_mul_i32 s75, s{LW}, {32*1152}")

    def issueKV(g, isB):
        base = (g % NS) * SLOT
        isK = g < G_V
        s = g - (G_K if isK else G_V)
        srdn = SRD_K if isK else SRD_V
        for hd in range(2 if isB else 1):
            a(f"s_add_u32 m0, s76, {base + hd*16384}")
            a(f"s_add_u32 s58, s76, {s*16384 + hd*131072}")
            for m in range(4):
                vo = 10 + m if isK else 14
                a(f"buffer_load_dwordx4 v{vo}, s[{srdn}:{srdn+3}], s58 offen offset:{m*1024}{kp} lds")
    def issueO(g):
        base = (g % NS) * SLOT
        a(f"s_lshl_b32 s58, s74, 7")
        a(f"s_add_u32 m0, s76, {base}")
        a(f"s_add_u32 s58, s58, s75")
        for m in range(4):
            a(f"buffer_load_dwordx4 v{16+m}, s[{SRD_WO}:{SRD_WO+3}], s58 offen offset:{m*1024}{wp} lds")
        a(f"s_add_u32 m0, s76, {base+16384}")
        a(f"s_add_u32 s58, s58, {128*1152}")
        for m in range(4):
            a(f"buffer_load_dwordx4 v{16+m}, s[{SRD_WO}:{SRD_WO+3}], s58 offen offset:{m*1024}{wp} lds")
        a("s_add_u32 s74, s74, 1")
        a("s_cmp_eq_u32 s74, 9")
        a("s_cselect_b32 s74, 0, s74")
    def cnt(g, isB):
        if g >= NG: return 0
        if g < G_K: return 10
        if g < G_O: return 8 if isB else 4
        return 8
    def lst(v, g):
        if cfg.lstamps:
            a("s_memrealtime s[82:83]")
            a("s_waitcnt lgkmcnt(0)")
            a(f"v_writelane_b32 v{v}, s82, {g}")
    def stage(g, isB):
        n = cnt(g + 1, isB) + cnt(g + 2, isB)
        if g == 0: n += extra
        a(f"s_waitcnt vmcnt({n})")
        lst(40, g)
        a("s_barrier")
        lst(41, g)
        j = g + 3
        if j < G_K: issueW(j)
        elif j < G_O: issueKV(j, isB)
        elif j < NG: issueO(j)
        lst(42, g)
        if g == G_O: a("s_barrier")
    g0 = G_K - 3
    gend = G_O - 1
    for g in range(0, g0): stage(g, True)
    a(f"s_cmp_eq_u32 s{S_BR}, 0")
    a("s_cbranch_scc1 L_ldA")
    for g in range(g0, gend): stage(g, True)
    a("s_branch L_ldO")
    a.label("L_ldA")
    for g in range(g0, gend): stage(g, False)
    a.label("L_ldO")
    for g in range(gend, NG): stage(g, True)
    if cfg.lstamps:
        a(f"""
        s_cmp_lg_u32 s{S_W}, 4
        s_cbranch_scc1 L_nols
        s_add_u32 s82, s44, {STAMP_OFF + (1 << 20)}
        s_addc_u32 s83, s45, 0
        s_mul_i32 s84, s2, 768
        v_lshlrev_b32 v43, 2, v1
        v_add_u32 v43, s84, v43
        global_store_dword v43, v40, s[82:83]
        global_store_dword v43, v41, s[82:83] offset:256
        global_store_dword v43, v42, s[82:83] offset:512
        L_nols:
        """)

def final(a, cfg, stamp, nst):
    a(f"""
    s_mul_i32 s58, s{S_HP}, 288
    v_add_u32 v2, s58, v0
    v_lshlrev_b32 v3, 4, v2
    v_and_b32 v4, 31, v2
    v_bfe_u32 v5, v2, 7, 1
    v_lshl_add_u32 v4, v5, 5, v4
    s_lshl_b32 s58, s{S_B}, 6
    v_add_u32 v4, s58, v4
    v_mul_u32_u24 v4, 2304, v4
    v_lshrrev_b32 v5, 9, v2
    v_lshl_add_u32 v4, v5, 7, v4
    v_bfe_u32 v5, v2, 8, 1
    v_lshl_add_u32 v4, v5, 6, v4
    v_bfe_u32 v5, v2, 6, 1
    v_lshl_add_u32 v4, v5, 5, v4
    v_bfe_u32 v5, v2, 5, 1
    v_lshl_add_u32 v4, v5, 4, v4
    s_mul_i32 s58, s{S_BR}, 1152
    v_add_u32 v4, s58, v4
    s_barrier
    s_cmp_lg_u32 s{S_W}, 0
    s_cbranch_scc1 L_polled
    v_mov_b32 v6, s39
    v_mov_b32 v7, 1
    s_mov_b64 exec, 1
    global_atomic_add v6, v7, s[42:43] sc1
    s_mov_b32 s58, 0
    L_poll:
    global_load_dword v8, v6, s[42:43] sc1
    s_add_u32 s58, s58, 1
    s_waitcnt vmcnt(0)
    v_readfirstlane_b32 s59, v8
    s_cmp_ge_u32 s58, 0x10000
    s_cbranch_scc1 L_pollx
    s_cmp_ge_u32 s59, 16
    s_cbranch_scc1 L_pollx
    s_sleep 1
    s_branch L_poll
    L_pollx:
    s_mov_b64 exec, -1
    L_polled:
    s_barrier
    """)
    stamp()
    a(f"""
    v_cmp_gt_u32 vcc, 288, v0
    s_and_saveexec_b64 s[58:59], vcc
    s_cbranch_execz L_done
    s_mov_b32 s38, 0
    """)
    for m in range(16):
        a(f"buffer_load_dwordx4 v[{128+4*m}:{131+4*m}], v3, s[{SRD_PR}:{SRD_PR+3}], s38 offen sc1")
        if m < 15: a(f"s_add_u32 s38, s38, {PART}")
    for m in range(16):
        a(f"s_waitcnt vmcnt({15-m})")
        for d in range(4):
            r = 128 + 4 * m + d
            if m == 0:
                a(f"v_lshlrev_b32 v{16+2*d}, 16, v{r}")
                a(f"v_and_b32 v{17+2*d}, 0xffff0000, v{r}")
            else:
                a(f"v_lshlrev_b32 v{24+2*d}, 16, v{r}")
                a(f"v_and_b32 v{25+2*d}, 0xffff0000, v{r}")
                a(f"v_pk_add_f32 v[{16+2*d}:{17+2*d}], v[{16+2*d}:{17+2*d}], v[{24+2*d}:{25+2*d}]")
    for d in range(4):
        a(f"v_cvt_pk_bf16_f32 v{32+d}, v{16+2*d}, v{17+2*d}")
    a(f"buffer_store_dwordx4 v[32:35], v4, s[{SRD_OUT}:{SRD_OUT+3}], 0 offen")
    if cfg.stamps:
        a("s_waitcnt vmcnt(0)")
        stamp()
        n = nst[0]
        a(f"""
        s_cmp_lg_u32 s{S_W}, 0
        s_cbranch_scc1 L_done
        s_mov_b64 exec, 1
        s_add_u32 s44, s44, {STAMP_OFF}
        s_addc_u32 s45, s45, 0
        s_mul_i32 s38, s2, {8*n}
        v_mov_b32 v3, s38
        """)
        if cfg.dbgstamps:
            words = [w for w in range(1, 16) if w % 4]
            a(f"s_not_b32 s38, s{STAMP0}")
            a("v_mov_b32 v4, s38")
            a(f"v_mov_b32 v5, {words[0]*4}")
            a("global_atomic_umax v5, v4, s[42:43] sc1")
            for j in range(n):
                a(f"v_mov_b32 v6, s{STAMP0+2*j}")
                a(f"v_mov_b32 v7, {words[1+j]*4}")
                a("global_atomic_umax v7, v6, s[42:43] sc1")
                a("s_nop 1")
        for j in range(n):
            a(f"v_mov_b32 v4, s{STAMP0+2*j}")
            a(f"v_mov_b32 v5, s{STAMP0+2*j+1}")
            a(f"global_store_dwordx2 v3, v[4:5], s[44:45] offset:{8*j}")
            a("s_nop 1")
    a.label("L_done")

if __name__ == "__main__":
    out = sys.argv[1]
    kw = {}
    for arg in sys.argv[2:]:
        k, v = arg.split("=", 1)
        kw[k] = eval(v)
    txt, ns, npad = gen(Cfg(**kw))
    open(out, "w").write(txt)
    print(out, "lines", txt.count("\n"), "stamps", ns, "nop-pad states", npad)
```

```python
import sys, math, struct
from asmlib import *
NAME = "concat_heads__gqa_block_cached__mha_block_cached__near_ridge"
STAMP_OFF = 200 << 20
SLOT = 40960
NS = 4
FLAG_OFF = 32 << 20
PART = 73728

def f32bits(x):
    return struct.unpack("<I", struct.pack("<f", x))[0]

class Cfg:
    kvpol = " nt"
    wpol = ""
    stamps = False
    xtouch = True
    codepf = True
    lstamps = False
    pfB = ()
    pfA = ()
    help = False
    leadB = 40960
    leadA = 40960
    wotouch = True
    wotB = 14
    wotA = 12
    wotH = 16
    dbgstamps = False
    nostore = False
    stpol = " sc1"
    def __init__(self, **kw):
        for k, v in kw.items():
            assert hasattr(self, k), k
            setattr(self, k, v)

HDR = open("cdna_kernels/" + NAME + ".s.ref").read().split("; Override launch")[0]

S_BR, S_HP, S_B, S_W = 5, 6, 7, 36
SRD_X, SRD_WQ, SRD_K, SRD_V, SRD_WO = 8, 12, 16, 20, 24
SRD_PW, SRD_PR, SRD_OUT = 60, 64, 68
S_C = 72
STAMP0 = 80

NW, NK, NV, NO = 9, 8, 8, 9
G_K, G_V, G_O = NW, NW + NK, NW + NK + NV
NG = NW + NK + NV + NO
RPOS = [-5, -5, -4, -3, -2, -1, 0, 1, 2, 2, 3, 4, 5, 6, 7, 8]

def gen(cfg):
    a = Stream()
    a.raw(HDR.rstrip())
    a.raw("; @launch grid=(256,1,1) block=(512,1,1) lds=163840")
    a.raw('.amdgcn_target "amdgcn-amd-amdhsa--gfx950"')
    a.raw(".text")
    a.raw(f".globl {NAME}_kernel")
    a.raw(".p2align 8")
    a.raw(f".type {NAME}_kernel,@function")
    a.label(f"{NAME}_kernel")
    nst = [0]
    def stamp():
        if cfg.stamps:
            i = nst[0]; nst[0] += 1
            a(f"s_memrealtime s[{STAMP0+2*i}:{STAMP0+2*i+1}]")
            a("s_waitcnt lgkmcnt(0)")
    a("s_cmp_ge_u32 s2, 256")
    a("s_cbranch_scc1 L_end")
    stamp()
    a(f"""
    s_lshr_b32 s4, s2, 3
    s_lshr_b32 s{S_BR}, s4, 4
    s_xor_b32 s{S_BR}, s{S_BR}, 1
    s_mul_i32 s38, s{S_BR}, 40
    s_add_u32 s46, s0, s38
    s_addc_u32 s47, s1, 0
    s_load_dwordx8 s[48:55], s[46:47], 0
    s_load_dwordx2 s[56:57], s[46:47], 32
    s_load_dwordx4 s[40:43], s[0:1], 80
    s_load_dwordx2 s[44:45], s[0:1], 96
    v_lshrrev_b32 v1, 6, v0
    s_and_b32 s3, s2, 7
    s_and_b32 s{S_HP}, s4, 1
    v_readfirstlane_b32 s{S_W}, v1
    s_lshl_b32 s3, s3, 1
    s_add_u32 s{S_HP}, s{S_HP}, s3
    s_lshr_b32 s{S_B}, s4, 1
    s_and_b32 s{S_B}, s{S_B}, 7
    v_and_b32 v1, 63, v0
    s_cmp_ge_u32 s{S_W}, 4
    s_cbranch_scc1 L_loader
    """)
    compute(a, cfg, stamp)
    a("s_branch L_final")
    a.label("L_loader")
    a.hist = []; a.lgkm = []
    loader(a, cfg)
    a.label("L_final")
    a.hist = []; a.lgkm = []
    final(a, cfg, stamp, nst)
    a.label("L_end")
    a("s_endpgm")
    a.label("L_codeend")
    a.raw('.section .rodata,"a"')
    a.raw(".p2align 6")
    a.raw(f".amdhsa_kernel {NAME}_kernel")
    a.raw("  .amdhsa_next_free_vgpr 256")
    a.raw("  .amdhsa_next_free_sgpr 102")
    a.raw("  .amdhsa_accum_offset 256")
    a.raw("  .amdhsa_group_segment_fixed_size 0")
    a.raw("  .amdhsa_kernarg_size 104")
    a.raw("  .amdhsa_user_sgpr_count 2")
    a.raw("  .amdhsa_user_sgpr_kernarg_segment_ptr 1")
    a.raw("  .amdhsa_system_sgpr_workgroup_id_x 1")
    a.raw(".end_amdhsa_kernel")
    return a.text(), nst[0], a.npad

def ws_srds(a):
    a(f"""
    s_lshl_b32 s58, s{S_BR}, 3
    s_add_u32 s58, s58, s{S_B}
    s_mul_i32 s59, s58, {16*PART}
    s_add_u32 s{SRD_PR}, s44, s59
    s_addc_u32 s{SRD_PR+1}, s45, 0
    s_mov_b32 s{SRD_PR+2}, {16*PART}
    s_mov_b32 s{SRD_PR+3}, 0x20000
    s_mul_i32 s59, s{S_HP}, {PART}
    s_add_u32 s{SRD_PW}, s{SRD_PR}, s59
    s_addc_u32 s{SRD_PW+1}, s{SRD_PR+1}, 0
    s_mov_b32 s{SRD_PW+2}, {PART}
    s_mov_b32 s{SRD_PW+3}, 0x20000
    s_mov_b32 s{SRD_OUT}, s40
    s_mov_b32 s{SRD_OUT+1}, s41
    s_mov_b32 s{SRD_OUT+2}, {8*64*1152*2}
    s_mov_b32 s{SRD_OUT+3}, 0x20000
    s_lshl_b32 s39, s58, 4
    s_lshl_b32 s59, s58, 8
    s_add_u32 s59, s59, {FLAG_OFF}
    s_add_u32 s28, s44, s59
    s_addc_u32 s29, s45, 0
    """)

cW, cX, cK, cV, cO, cEw, cEr = 2, 3, 4, 5, 6, 7, 8
vM, vL0, vL1, vMC = 9, 10, 11, 12
vINV = 14
vLN16 = 13
AD = 16
TMP = 24
FR = 32
XF = 64
QF = 64
SA = 96
OA = 64
SP = 128
QA = 128
OF = 128
OW = 192
PA = 192
PK = 224

def vr(b, n): return f"v[{b}:{b+n-1}]"

def compute(a, cfg, stamp):
    a(f"""
    s_lshr_b32 s37, s{S_W}, 1
    s_and_b32 s38, s{S_W}, 1
    v_lshrrev_b32 v24, 5, v1
    v_bfe_u32 v25, v1, 4, 1
    v_bfe_u32 v26, v1, 2, 2
    v_and_b32 v27, 1, v1
    v_bfe_u32 v28, v1, 1, 1
    v_lshlrev_b32 v29, 5, v25
    v_lshl_add_u32 v30, v27, 4, v29
    v_lshl_add_u32 v30, v28, 3, v30
    v_lshl_add_u32 v31, v28, 4, v29
    v_lshl_add_u32 v31, v27, 3, v31
    """)
    a(f"""
    v_lshlrev_b32 v{cW}, 12, v24
    v_mul_u32_u24 v29, 576, v26
    v_add3_u32 v{cW}, v{cW}, v29, v30
    s_lshl_b32 s58, s37, 8
    v_add_u32 v{cW}, s58, v{cW}
    v_and_b32 v29, 31, v1
    v_bfe_u32 v27, v1, 1, 3
    v_xor_b32 v27, v27, v24
    v_lshlrev_b32 v27, 4, v27
    v_lshl_add_u32 v{cX}, v29, 7, v27
    s_lshl_b32 s58, s38, 12
    s_add_u32 s58, s58, 32768
    v_add_u32 v{cX}, s58, v{cX}
    s_lshl_b32 s58, s37, 14
    s_mul_i32 s58, s58, s{S_BR}
    v_and_b32 v27, 15, v1
    v_xor_b32 v27, v27, v24
    v_lshlrev_b32 v27, 4, v27
    v_lshl_add_u32 v{cK}, v29, 8, v27
    v_add_u32 v{cK}, s58, v{cK}
    v_lshlrev_b32 v{cV}, 10, v24
    v_mul_u32_u24 v29, 320, v26
    v_add3_u32 v{cV}, v{cV}, v29, v31
    v_add_u32 v{cV}, s58, v{cV}
    v_lshlrev_b32 v{cO}, 9, v24
    v_lshl_add_u32 v{cO}, v26, 7, v{cO}
    v_lshrrev_b32 v27, 1, v26
    v_xor_b32 v27, s37, v27
    v_lshl_add_u32 v{cO}, v27, 6, v{cO}
    v_add_u32 v{cO}, v{cO}, v30
    v_lshlrev_b32 v{vLN16}, 4, v1
    s_mul_i32 s58, s{S_W}, {SLOT}
    s_add_u32 s58, s58, 32768
    v_add_u32 v{cEw}, s58, v{vLN16}
    s_mul_i32 s58, s38, {SLOT}
    s_add_u32 s58, s58, 32768
    v_add_u32 v{cEr}, s58, v{vLN16}
    v_mov_b32 v{vM}, 0xff800000
    v_mov_b32 v{vL0}, 0
    v_mov_b32 v{vL1}, 0
    s_mov_b32 s{S_C}, {f32bits((128 ** -0.5) * math.log2(math.e)):#x}
    s_waitcnt lgkmcnt(0)
    """)
    ws_srds(a)
    a(f"""
    s_mov_b32 s74, s{S_B}
    s_lshl_b32 s75, s{S_W}, 11
    s_cmp_lg_u32 s{S_W}, 0
    s_cbranch_scc1 L_noclr
    s_lshl_b32 s58, s{S_HP}, 2
    v_mov_b32 v24, s58
    v_mov_b32 v25, 0
    v_mov_b32 v26, s39
    v_mov_b32 v27, 1
    s_mov_b64 exec, 1
    global_store_dword v24, v25, s[28:29] sc1
    s_waitcnt vmcnt(0)
    global_atomic_add v26, v27, s[42:43] sc1
    s_mov_b64 exec, -1
    L_noclr:
    """)

    NM = NG * 16
    post = [[] for _ in range(NM)]
    pre = []
    bubble = [[] for _ in range(NM)]
    mf = [None] * NM
    def put(pos, items):
        (pre if pos < 0 else post[pos]).extend(items)

    def addr_update(g):
        base = (g % NS) * SLOT
        L = []
        def base_add(dst, c):
            if base: L.append(f"v_add_u32 v{dst}, {base}, v{c}")
            else: L.append(f"v_mov_b32 v{dst}, v{c}")
        if g < G_K:
            base_add(AD, cW)
            for cb in range(1, 4): L.append(f"v_xor_b32 v{AD+cb}, {cb<<6}, v{AD}")
            base_add(AD + 4, cX)
            for t in range(1, 4): L.append(f"v_xor_b32 v{AD+4+t}, {t<<5}, v{AD+4}")
        elif g < G_V:
            base_add(AD, cK)
            for t in range(1, 8): L.append(f"v_xor_b32 v{AD+t}, {t<<5}, v{AD}")
        elif g < G_O:
            base_add(AD, cV)
            for db in range(1, 4): L.append(f"v_xor_b32 v{AD+db}, {db<<6}, v{AD}")
        else:
            base_add(AD, cO)
        return L

    for g in range(NG):
        b0 = g * 16
        au = addr_update(g)
        if g == 0:
            put(-1, au)
        else:
            h = (len(au) + 1) // 2
            put(b0 - 7, au[:h]); put(b0 - 6, au[h:])
        put(b0 - 5, ["@bar"])
        for f in range(16):
            buf = FR + 4 * (f % 8)
            rd = []
            if g < G_K:
                t, cb = divmod(f, 4)
                xb = XF + 4 * ((g * 4 + t) % 3)
                if cb == 0:
                    rd.append(f"ds_read_b128 {vr(xb,4)}, v{AD+4+t}")
                for u in range(2):
                    rd.append(f"ds_read_b64_tr_b16 {vr(buf+2*u,2)}, v{AD+cb} offset:{t*8192+u*2048}")
                acc = QA + 16 * cb
                c = "0" if (g == 0 and t == 0) else vr(acc, 16)
                mf[b0 + f] = f"v_mfma_f32_32x32x16_bf16 {vr(acc,16)}, {vr(buf,4)}, {vr(xb,4)}, {c}"
            elif g < G_V:
                kb, t = divmod(f, 8)
                rd.append(f"ds_read_b128 {vr(buf,4)}, v{AD+t} offset:{kb*8192}")
                acc = SA + 16 * kb
                c = "0" if t == 0 else vr(acc, 16)
                mf[b0 + f] = f"v_mfma_f32_32x32x16_bf16 {vr(acc,16)}, {vr(buf,4)}, {vr(QF+4*t,4)}, {c}"
            elif g < G_O:
                kt, db = divmod(f, 4)
                s = g - G_V
                for u in range(2):
                    rd.append(f"ds_read_b64_tr_b16 {vr(buf+2*u,2)}, v{AD+db} offset:{kt*4096+u*2048}")
                acc = OA + 16 * db
                c = "0" if (s == 0 and kt == 0) else vr(acc, 16)
                mf[b0 + f] = f"v_mfma_f32_32x32x16_bf16 {vr(acc,16)}, {vr(buf,4)}, {vr(SP+16*s+4*kt,4)}, {c}"
            else:
                ks = f
                for u in range(2):
                    rd.append(f"ds_read_b64_tr_b16 {vr(buf+2*u,2)}, v{AD} offset:{ks*2048+u*1024}")
                acc = PA + 16 * ((g - G_O) & 1)
                c = "0" if ks == 0 else vr(acc, 16)
                mf[b0 + f] = f"v_mfma_f32_32x32x16_bf16 {vr(acc,16)}, {vr(buf,4)}, {vr(OF+4*ks,4)}, {c}"
            put(b0 + RPOS[f], rd)

    def spread(items, p0, p1):
        n = p1 - p0 + 1
        for i, it in enumerate(items):
            post[p0 + i * n // len(items)].append(it)

    L = ["@stamp"]
    for cb in range(4):
        for p in range(8):
            L.append(f"v_cvt_pk_bf16_f32 v{QF+8*cb+p}, v{QA+16*cb+2*p}, v{QA+16*cb+2*p+1}")
    bubble[G_K * 16 - 1] = L

    def sproc(blk):
        acc = SA + 16 * (blk & 1)
        L = []
        for p in range(8):
            L.append(f"v_max3_f32 v{vM}, v{acc+2*p}, v{acc+2*p+1}, v{vM}")
            L.append(f"v_cvt_pk_bf16_f32 v{SP+8*blk+p}, v{acc+2*p}, v{acc+2*p+1}")
        return L
    for s in range(NK):
        b0 = (G_K + s) * 16
        spread(sproc(2 * s), b0 + 11, b0 + 15)
        if s + 1 < NK:
            spread(sproc(2 * s + 1), b0 + 16 + 2, b0 + 16 + 7)

    def pexp(i, k):
        t0 = TMP + 2 * (k % 4); t1 = t0 + 1
        r = SP + i
        return [f"v_lshlrev_b32 v{t0}, 16, v{r}",
                f"v_and_b32 v{t1}, 0xffff0000, v{r}",
                f"v_fma_f32 v{t0}, v{t0}, s{S_C}, -v{vMC}",
                f"v_fma_f32 v{t1}, v{t1}, s{S_C}, -v{vMC}",
                f"v_exp_f32 v{t0}, v{t0}",
                f"v_exp_f32 v{t1}, v{t1}",
                f"v_add_f32 v{vL0}, v{vL0}, v{t0}",
                f"v_add_f32 v{vL1}, v{vL1}, v{t1}",
                f"v_cvt_pk_bf16_f32 v{r}, v{t0}, v{t1}"]
    L = ["@stamp"] + sproc(2 * NK - 1)
    L += [f"v_mov_b32 v{TMP}, v{vM}",
          f"v_permlane32_swap_b32 v{TMP}, v{vM}",
          f"v_max_f32 v{vM}, v{TMP}, v{vM}",
          f"v_mul_f32 v{vMC}, s{S_C}, v{vM}"]
    for i in range(16): L += pexp(i, i)
    bubble[G_V * 16 - 1] = L
    for s in range(NV - 1):
        b0 = (G_V + s) * 16
        for i in range(16):
            post[b0 + i] += pexp(16 * (s + 1) + i, i)
    b0 = (G_O - 1) * 16
    post[b0 + 1] += [f"v_add_f32 v{vL0}, v{vL0}, v{vL1}", f"v_mov_b32 v{vL1}, v{vL0}"]
    post[b0 + 2] += [f"v_permlane32_swap_b32 v{vL0}, v{vL1}"]
    post[b0 + 3] += [f"v_add_f32 v{vL0}, v{vL0}, v{vL1}"]
    post[b0 + 4] += [f"v_rcp_f32 v{vINV}, v{vL0}"]
    post[b0 + 5] += [f"v_mov_b32 v{vINV+1}, v{vINV}"]
    L = ["@stamp"]
    for db in range(4):
        for p in range(8):
            r = OA + 16 * db + 2 * p
            L.append(f"v_pk_mul_f32 {vr(r,2)}, {vr(r,2)}, {vr(vINV,2)}")
        for p in range(8):
            r = OA + 16 * db + 2 * p
            L.append(f"v_cvt_pk_bf16_f32 v{OW+8*db+p}, v{r}, v{r+1}")
        for hf in range(2):
            L.append(f"ds_write_b128 v{cEw}, {vr(OW+8*db+4*hf,4)} offset:{(2*db+hf)*1024}")
    L.append(f"v_add_u32 v{TMP}, {2*SLOT}, v{cEr}")
    L.append("@bar")
    for hd in range(2):
        for i in range(8):
            L.append(f"ds_read_b128 {vr(OF+32*hd+4*i,4)}, v{cEr if hd == 0 else TMP} offset:{i*1024}")
    bubble[G_O * 16 - 1] = L

    def oproc(j):
        acc = PA + 16 * (j & 1); pk = PK + 8 * (j & 1)
        L = [f"s_lshl_b32 s73, s74, 13", "s_add_u32 s73, s73, s75",
             "s_add_u32 s74, s74, 1", "s_cmp_eq_u32 s74, 9", "s_cselect_b32 s74, 0, s74"]
        for p in range(8):
            L.append(f"v_cvt_pk_bf16_f32 v{pk+p}, v{acc+2*p}, v{acc+2*p+1}")
            if p % 4 == 3:
                i = p // 4
                if not cfg.nostore:
                    L.append(f"buffer_store_dwordx4 {vr(pk+4*i,4)}, v{vLN16}, s[{SRD_PW}:{SRD_PW+3}], s73 offen offset:{i*1024}{cfg.stpol}")
        return L
    for j in range(NO - 1):
        b0 = (G_O + j + 1) * 16
        spread(oproc(j), b0 + 2, b0 + 8)
    bubble[NM - 1] = ["@stamp"] + oproc(NO - 1)

    def emit(items):
        for it in items:
            if it == "@bar":
                a("s_waitcnt lgkmcnt(0)")
                a("s_barrier")
            elif it == "@stamp":
                stamp()
            else:
                a(it)
    emit(pre)
    for i in range(NM):
        if cfg.stamps and i == 0: stamp()
        a(mf[i])
        emit(post[i])
        emit(bubble[i])
    a("s_waitcnt vmcnt(0)")
    stamp()

def loader(a, cfg):
    LW = 37
    wp = cfg.wpol; kp = cfg.kvpol
    a(f"""
    s_sub_u32 s{LW}, s{S_W}, 4
    v_lshrrev_b32 v20, 5, v1
    v_and_b32 v21, 31, v1
    v_lshrrev_b32 v22, 3, v1
    v_lshrrev_b32 v23, 4, v1
    v_and_b32 v24, 7, v1
    v_and_b32 v25, 15, v1
    s_lshl_b32 s76, s{LW}, 12
    s_lshl_b32 s77, s{LW}, 16
    s_lshl_b32 s78, s{LW}, 11
    s_add_u32 s78, s78, 32768
    s_mul_i32 s79, s{LW}, {16*1152}
    s_mul_i32 s75, s{LW}, {32*1152}
    s_mov_b32 s74, s{S_B}
    """)
    def patK():
        for m in range(4):
            a(f"""
            v_add_u32 v26, {4*m}, v23
            v_xor_b32 v26, v26, v25
            v_lshlrev_b32 v26, 4, v26
            v_lshl_add_u32 v{10+m}, v23, 8, v26
            """)
        a(f"""
        v_lshlrev_b32 v26, 2, v23
        v_xor_b32 v26, v26, v25
        v_lshlrev_b32 v26, 4, v26
        v_lshl_add_u32 v14, v23, 8, v26
        """)
    def patW():
        for m in range(4):
            a(f"""
            v_add_u32 v26, {2*m}, v20
            v_and_b32 v27, 3, v26
            v_lshlrev_b32 v27, 2, v27
            v_xor_b32 v27, v27, v21
            v_lshlrev_b32 v27, 4, v27
            v_lshl_add_u32 v{4+m}, v26, 13, v27
            """)
            if m: a(f"v_subrev_u32 v{4+m}, {m*1024}, v{4+m}")
        for m in range(2):
            a(f"""
            v_add_u32 v26, {8*m}, v22
            v_add_u32 v27, {4*m}, v23
            v_xor_b32 v27, v27, v24
            v_lshlrev_b32 v27, 4, v27
            v_mul_u32_u24 v26, 1152, v26
            v_add_u32 v{8+m}, v26, v27
            """)
            if m: a(f"v_subrev_u32 v{8+m}, {m*1024}, v{8+m}")
    def patO():
        a(f"""
        v_and_b32 v26, 1, v23
        v_lshlrev_b32 v26, 2, v26
        v_xor_b32 v26, v26, v24
        v_lshlrev_b32 v26, 4, v26
        v_mul_u32_u24 v27, 1152, v22
        v_add_u32 v16, v26, v27
        v_lshlrev_b32 v15, 4, v1
        v_add_u32 v15, s76, v15
        """)
        for m in range(1, 4):
            a(f"v_add_u32 v{16+m}, {m*(8*1152-1024)}, v16")
    def srd(d, p, off, size):
        a(f"s_add_u32 s{d}, s{p}, s{off}")
        a(f"s_addc_u32 s{d+1}, s{p+1}, 0")
        a(f"s_mov_b32 s{d+2}, {size}")
        a(f"s_mov_b32 s{d+3}, 0x20000")
    def srdW():
        a(f"s_mul_i32 s38, s{S_B}, 73728"); srd(SRD_X, 48, 38, 73728)
        a(f"s_lshl_b32 s38, s{S_HP}, 9"); srd(SRD_WQ, 54, 38, 575 * 8192 + 512)
    def srdKV(isB):
        a(f"""
        s_lshl_b32 s38, s{S_B}, 4
        s_add_u32 s38, s38, s{S_HP}
        s_lshl_b32 s38, s38, {18 if isB else 17}
        """)
        srd(SRD_K, 50, 38, 262144 if isB else 131072); srd(SRD_V, 52, 38, 262144 if isB else 131072)
    def srdO():
        a(f"s_mul_i32 s38, s{S_HP}, 294912"); srd(SRD_WO, 56, 38, 294912)
    def lst(v, g):
        if cfg.lstamps:
            a("s_memrealtime s[82:83]")
            a("s_waitcnt lgkmcnt(0)")
            a(f"v_writelane_b32 v{v}, s82, {g}")

    def program(isB):
        tag = "B" if isB else "A"
        vm = []
        def ld(txt, t):
            a(txt); vm.append(t)
        pf = list(cfg.pfB if isB else cfg.pfA)
        nper = 8 if isB else 4
        preg = {t: 48 + 4 * nper * i for i, t in enumerate(pf)}
        assert 48 + 4 * nper * len(pf) <= 256
        def touch_lin(srdn, off_sgpr_setup):
            a(off_sgpr_setup)
            a(f"s_mul_i32 s59, s{LW}, {72*128}")
            a("s_add_u32 s58, s58, s59")
            ld(f"buffer_load_dword v28, v44, s[{srdn}:{srdn+3}], s58 offen{wp}", "t")
            a("s_add_u32 s58, s58, 8192")
            ld(f"buffer_load_dword v29, v45, s[{srdn}:{srdn+3}], s58 offen{wp}", "t")
        def touch_wq(srdn):
            a(f"s_mul_i32 s58, s{S_B}, 72")
            a(f"s_mul_i32 s59, s{LW}, 18")
            a("s_add_u32 s58, s58, s59")
            a("s_lshl_b32 s58, s58, 13")
            ld(f"buffer_load_dword v28, v46, s[{srdn}:{srdn+3}], s58 offen{wp}", "t")
            a(f"s_add_u32 s58, s58, {16*8192}")
            ld(f"buffer_load_dword v29, v47, s[{srdn}:{srdn+3}], s58 offen{wp}", "t")
        def pat_touch():
            a(f"""
            v_lshlrev_b32 v44, 7, v1
            v_lshlrev_b32 v45, 7, v22
            v_lshrrev_b32 v46, 2, v1
            v_lshlrev_b32 v46, 13, v46
            v_and_b32 v47, 3, v1
            v_lshl_add_u32 v46, v47, 7, v46
            v_lshlrev_b32 v47, 7, v47
            v_lshl_add_u32 v47, v20, 13, v47
            """)
        xhalf = f"s_and_b32 s58, s{S_HP}, 1\ns_mul_i32 s58, s58, {288*128}"
        woshare = f"s_mul_i32 s58, s{S_B}, {288*128}"
        def codepf():
            a(f"""
            s_getpc_b64 s[58:59]
            L_pc{tag}:
            s_lshr_b32 s38, s2, 3
            s_lshl_b32 s38, s38, 2
            s_add_u32 s38, s38, s{LW}
            s_lshl_b32 s38, s38, 9
            s_min_u32 s38, s38, L_codeend-{NAME}_kernel-512
            s_sub_u32 s58, s58, L_pc{tag}-{NAME}_kernel
            s_subb_u32 s59, s59, 0
            v_lshlrev_b32 v26, 3, v1
            v_add_u32 v26, s38, v26
            """)
            ld("global_load_dwordx2 v[30:31], v26, s[58:59]", "t")
        groups = []
        def gW(g, part):
            base = (g % NS) * SLOT
            def f():
                if part < 2:
                    a(f"s_lshl_b32 s58, s74, 19")
                    a(f"s_add_u32 m0, s76, {base + part*16384}")
                    a(f"s_add_u32 s58, s58, s77")
                    if part: a(f"s_add_u32 s58, s58, {32*8192}")
                    for m in range(4):
                        ld(f"buffer_load_dwordx4 v{4+m}, s[{SRD_WQ}:{SRD_WQ+3}], s58 offen offset:{m*1024}{wp} lds", g)
                else:
                    a(f"s_lshl_b32 s58, s74, 7")
                    a(f"s_add_u32 m0, s78, {base}")
                    a(f"s_add_u32 s58, s58, s79")
                    for m in range(2):
                        ld(f"buffer_load_dwordx4 v{8+m}, s[{SRD_X}:{SRD_X+3}], s58 offen offset:{m*1024}{wp} lds", g)
                    a("s_add_u32 s74, s74, 1")
                    a("s_cmp_eq_u32 s74, 9")
                    a("s_cselect_b32 s74, 0, s74")
            return f
        def kvsrc(g, hd):
            isK = g < G_V
            s = g - (G_K if isK else G_V)
            return (SRD_K if isK else SRD_V), s * 16384 + hd * 131072, (lambda m: 10 + m if isK else 14)
        def gKV(g, hd):
            base = (g % NS) * SLOT
            srdn, off, vo = kvsrc(g, hd)
            def f():
                a(f"s_add_u32 m0, s76, {base + hd*16384}")
                a(f"s_add_u32 s58, s76, {off}")
                for m in range(4):
                    ld(f"buffer_load_dwordx4 v{vo(m)}, s[{srdn}:{srdn+3}], s58 offen offset:{m*1024}{kp} lds", g)
            return f
        def gREG(g):
            base = (g % NS) * SLOT
            def f():
                a(f"v_add_u32 v26, {base}, v15")
                for hd in range(2 if isB else 1):
                    for m in range(4):
                        r = preg[g] + 16 * hd + 4 * m
                        a(f"ds_write_b128 v26, v[{r}:{r+3}] offset:{hd*16384 + m*1024}")
            return f
        def gO(g, part):
            base = (g % NS) * SLOT
            def f():
                a(f"s_lshl_b32 s58, s74, 7")
                a(f"s_add_u32 m0, s76, {base + part*16384}")
                a(f"s_add_u32 s58, s58, s75")
                if part: a(f"s_add_u32 s58, s58, {128*1152}")
                for m in range(4):
                    ld(f"buffer_load_dwordx4 v{16+m}, s[{SRD_WO}:{SRD_WO+3}], s58 offen offset:{m*1024}{wp} lds", g)
                if part:
                    a("s_add_u32 s74, s74, 1")
                    a("s_cmp_eq_u32 s74, 9")
                    a("s_cselect_b32 s74, 0, s74")
            return f
        regw = []
        for g in range(NG):
            if g < G_K:
                groups += [(g, 16384, gW(g, 0)), (g, 16384, gW(g, 1)), (g, 8192, gW(g, 2))]
            elif g < G_O:
                if g in pf: regw.append(g)
                else: groups += [(g, 16384, gKV(g, hd)) for hd in range(2 if isB else 1)]
            else:
                groups += [(g, 16384, gO(g, 0)), (g, 16384, gO(g, 1))]
        helpB = (not isB) and cfg.help
        if helpB:
            a("s_load_dwordx2 s[84:85], s[0:1], 40")
            a("s_load_dwordx4 s[88:91], s[0:1], 64")
        if pf:
            patK()
            a("s_waitcnt lgkmcnt(0)")
            srdKV(isB)
            first = True
            for t in pf:
                for hd in range(2 if isB else 1):
                    srdn, off, vo = kvsrc(t, hd)
                    a(f"s_add_u32 s58, s76, {off}")
                    for m in range(4):
                        r = preg[t] + 16 * hd + 4 * m
                        ld(f"buffer_load_dwordx4 v[{r}:{r+3}], v{vo(m)}, s[{srdn}:{srdn+3}], s58 offen offset:{m*1024}{kp}", "p")
                if first:
                    first = False
                    if cfg.codepf: codepf()
                    patW(); pat_touch(); srdW()
                    if not (isB and cfg.help):
                        touch_wq(SRD_WQ); touch_lin(SRD_X, xhalf)
        else:
            patW(); pat_touch()
            a("s_waitcnt lgkmcnt(0)")
            srdW()
        gi = [0]
        def issue_next():
            groups[gi[0]][2](); gi[0] += 1
        if not pf:
            while groups[gi[0]][0] == 0: issue_next()
            if cfg.xtouch: touch_lin(SRD_X, xhalf)
            if cfg.codepf: codepf()
            patK(); srdKV(isB)
        if helpB:
            a(f"s_mul_i32 s38, s{S_HP}, 294912"); srd(96, 90, 38, 294912)
            a(f"s_lshl_b32 s38, s{S_HP}, 9"); srd(92, 88, 38, 575 * 8192 + 512)
            a(f"s_mul_i32 s38, s{S_B}, 73728"); srd(84, 84, 38, 73728)
            touch_wq(92); touch_lin(84, xhalf)
        patO(); srdO()
        ws_srds(a)
        lead = cfg.leadB if isB else cfg.leadA
        wt = cfg.wotB if isB else cfg.wotA
        for g in range(NG):
            wrote = False
            while regw and regw[0] <= g + NS - 2:
                gREG(regw.pop(0))(); wrote = True
            if g == wt and cfg.wotouch:
                if not (isB and cfg.help): touch_lin(SRD_WO, woshare)
            if helpB and g == cfg.wotH and cfg.wotouch:
                touch_lin(96, woshare)
            while gi[0] < len(groups):
                t, nb, _ = groups[gi[0]]
                ahead = sum(x[1] for x in groups[:gi[0]] if x[0] > g)
                if t <= g or (t <= g + NS - 2 and ahead < lead): issue_next()
                else: break
            lst(42, g)
            last = max((i for i, t in enumerate(vm) if t == g), default=-1)
            if last >= 0:
                n = len(vm) - 1 - last
                assert n <= 63
                a(f"s_waitcnt vmcnt({n})" + (" lgkmcnt(0)" if wrote else ""))
            elif wrote:
                a("s_waitcnt lgkmcnt(0)")
            lst(40, g)
            a("s_barrier")
            lst(41, g)
            if g == G_O:
                while gi[0] < len(groups):
                    t, nb, _ = groups[gi[0]]
                    ahead = sum(x[1] for x in groups[:gi[0]] if x[0] > g + 1)
                    if t <= g + 1 or (t <= g + NS - 1 and ahead < lead): issue_next()
                    else: break
                a("s_barrier")
        assert gi[0] == len(groups) and not regw

    a(f"s_cmp_eq_u32 s{S_BR}, 0")
    a("s_cbranch_scc1 L_ldA")
    program(True)
    a("s_branch L_ldend")
    a.label("L_ldA")
    a.hist = []; a.lgkm = []
    program(False)
    a.label("L_ldend")
    if cfg.lstamps:
        a(f"""
        s_cmp_lg_u32 s{S_W}, 4
        s_cbranch_scc1 L_nols
        s_add_u32 s82, s44, {STAMP_OFF + (1 << 20)}
        s_addc_u32 s83, s45, 0
        s_mul_i32 s84, s2, 768
        v_lshlrev_b32 v43, 2, v1
        v_add_u32 v43, s84, v43
        global_store_dword v43, v40, s[82:83]
        global_store_dword v43, v41, s[82:83] offset:256
        global_store_dword v43, v42, s[82:83] offset:512
        L_nols:
        """)
    a(f"""
    s_cmp_lg_u32 s{S_W}, 4
    s_cbranch_scc1 L_chkd
    v_mov_b32 v6, s39
    s_mov_b32 s58, 0
    L_chk:
    global_load_dword v8, v6, s[42:43] sc1
    s_add_u32 s58, s58, 1
    s_waitcnt vmcnt(0)
    v_readfirstlane_b32 s59, v8
    s_cmp_ge_u32 s58, 0x10000
    s_cbranch_scc1 L_chkd
    s_cmp_ge_u32 s59, 16
    s_cbranch_scc1 L_chkd
    s_sleep 8
    s_branch L_chk
    L_chkd:
    """)

def final(a, cfg, stamp, nst):
    a(f"""
    s_mul_i32 s58, s{S_HP}, 288
    v_add_u32 v2, s58, v0
    v_lshlrev_b32 v3, 4, v2
    v_and_b32 v4, 31, v2
    v_bfe_u32 v5, v2, 7, 1
    v_lshl_add_u32 v4, v5, 5, v4
    s_lshl_b32 s58, s{S_B}, 6
    v_add_u32 v4, s58, v4
    v_mul_u32_u24 v4, 2304, v4
    v_lshrrev_b32 v5, 9, v2
    v_lshl_add_u32 v4, v5, 7, v4
    v_bfe_u32 v5, v2, 8, 1
    v_lshl_add_u32 v4, v5, 6, v4
    v_bfe_u32 v5, v2, 6, 1
    v_lshl_add_u32 v4, v5, 5, v4
    v_bfe_u32 v5, v2, 5, 1
    v_lshl_add_u32 v4, v5, 4, v4
    s_mul_i32 s58, s{S_BR}, 1152
    v_add_u32 v4, s58, v4
    s_barrier
    s_cmp_lg_u32 s{S_W}, 0
    s_cbranch_scc1 L_noset
    s_lshl_b32 s58, s{S_HP}, 2
    v_mov_b32 v6, s58
    v_mov_b32 v7, 1
    s_mov_b64 exec, 1
    global_store_dword v6, v7, s[28:29] sc1
    s_mov_b64 exec, -1
    L_noset:
    s_cmp_lg_u32 s{S_W}, 4
    s_cbranch_scc1 L_polled
    v_and_b32 v6, 15, v0
    v_lshlrev_b32 v6, 2, v6
    s_mov_b32 s58, 0
    L_poll:
    global_load_dword v8, v6, s[28:29] sc1
    s_add_u32 s58, s58, 1
    s_waitcnt vmcnt(0)
    v_cmp_ne_u32 vcc, 1, v8
    s_cmp_ge_u32 s58, 0x10000
    s_cbranch_scc1 L_polled
    s_cbranch_vccz L_polled
    s_sleep 1
    s_branch L_poll
    L_polled:
    s_barrier
    """)
    stamp()
    a(f"""
    v_cmp_gt_u32 vcc, 288, v0
    s_and_saveexec_b64 s[58:59], vcc
    s_cbranch_execz L_done
    s_mov_b32 s38, 0
    """)
    for m in range(16):
        a(f"buffer_load_dwordx4 v[{128+4*m}:{131+4*m}], v3, s[{SRD_PR}:{SRD_PR+3}], s38 offen sc1")
        if m < 15: a(f"s_add_u32 s38, s38, {PART}")
    for m in range(16):
        a(f"s_waitcnt vmcnt({15-m})")
        for d in range(4):
            r = 128 + 4 * m + d
            if m == 0:
                a(f"v_lshlrev_b32 v{16+2*d}, 16, v{r}")
                a(f"v_and_b32 v{17+2*d}, 0xffff0000, v{r}")
            else:
                a(f"v_lshlrev_b32 v{24+2*d}, 16, v{r}")
                a(f"v_and_b32 v{25+2*d}, 0xffff0000, v{r}")
                a(f"v_pk_add_f32 v[{16+2*d}:{17+2*d}], v[{16+2*d}:{17+2*d}], v[{24+2*d}:{25+2*d}]")
    for d in range(4):
        a(f"v_cvt_pk_bf16_f32 v{32+d}, v{16+2*d}, v{17+2*d}")
    a(f"buffer_store_dwordx4 v[32:35], v4, s[{SRD_OUT}:{SRD_OUT+3}], 0 offen")
    if cfg.stamps:
        a("s_waitcnt vmcnt(0)")
        stamp()
        n = nst[0]
        a(f"""
        s_cmp_lg_u32 s{S_W}, 0
        s_cbranch_scc1 L_done
        s_mov_b64 exec, 1
        s_add_u32 s44, s44, {STAMP_OFF}
        s_addc_u32 s45, s45, 0
        s_mul_i32 s38, s2, {8*n}
        v_mov_b32 v3, s38
        """)
        if cfg.dbgstamps:
            words = [w for w in range(1, 16) if w % 4]
            a(f"s_not_b32 s38, s{STAMP0}")
            a("v_mov_b32 v4, s38")
            a(f"v_mov_b32 v5, {words[0]*4}")
            a("global_atomic_umax v5, v4, s[42:43] sc1")
            for j in range(n):
                a(f"v_mov_b32 v6, s{STAMP0+2*j}")
                a(f"v_mov_b32 v7, {words[1+j]*4}")
                a("global_atomic_umax v7, v6, s[42:43] sc1")
                a("s_nop 1")
        for j in range(n):
            a(f"v_mov_b32 v4, s{STAMP0+2*j}")
            a(f"v_mov_b32 v5, s{STAMP0+2*j+1}")
            a(f"global_store_dwordx2 v3, v[4:5], s[44:45] offset:{8*j}")
            a("s_nop 1")
    a.label("L_done")

if __name__ == "__main__":
    out = sys.argv[1]
    kw = {}
    for arg in sys.argv[2:]:
        k, v = arg.split("=", 1)
        kw[k] = eval(v)
    txt, ns, npad = gen(Cfg(**kw))
    open(out, "w").write(txt)
    print(out, "lines", txt.count("\n"), "stamps", ns, "nop-pad states", npad)
```

```python
import sys, math, struct
from asmlib import *
NAME = "concat_heads__gqa_block_cached__mha_block_cached__near_ridge"
STAMP_OFF = 200 << 20
SLOT = 40960
NS = 4
FLAG_OFF = 32 << 20
PART = 73728

def f32bits(x):
    return struct.unpack("<I", struct.pack("<f", x))[0]

class Cfg:
    kvpol = " nt"
    wpol = ""
    stamps = False
    xtouch = True
    codepf = True
    lstamps = False
    pfB = ()
    pfA = ()
    help = False
    leadB = 40960
    leadA = 40960
    wotouch = True
    wotB = 14
    wotA = 12
    wotH = 16
    dbgstamps = False
    nostore = False
    stpol = " sc1"
    def __init__(self, **kw):
        for k, v in kw.items():
            assert hasattr(self, k), k
            setattr(self, k, v)

HDR = open("cdna_kernels/" + NAME + ".s.ref").read().split("; Override launch")[0]

S_BR, S_HP, S_B, S_W = 5, 6, 7, 36
SRD_X, SRD_WQ, SRD_K, SRD_V, SRD_WO = 8, 12, 16, 20, 24
SRD_PW, SRD_PR, SRD_OUT = 60, 64, 68
S_C = 72
STAMP0 = 80

NW, NK, NV, NO = 9, 8, 8, 9
G_K, G_V, G_O = NW, NW + NK, NW + NK + NV
NG = NW + NK + NV + NO
RPOS = [-5, -5, -4, -3, -2, -1, 0, 1, 2, 2, 3, 4, 5, 6, 7, 8]

def gen(cfg):
    a = Stream()
    a.raw(HDR.rstrip())
    a.raw("; @launch grid=(256,1,1) block=(512,1,1) lds=163840")
    a.raw('.amdgcn_target "amdgcn-amd-amdhsa--gfx950"')
    a.raw(".text")
    a.raw(f".globl {NAME}_kernel")
    a.raw(".p2align 8")
    a.raw(f".type {NAME}_kernel,@function")
    a.label(f"{NAME}_kernel")
    nst = [0]
    def stamp():
        if cfg.stamps:
            i = nst[0]; nst[0] += 1
            a(f"s_memrealtime s[{STAMP0+2*i}:{STAMP0+2*i+1}]")
            a("s_waitcnt lgkmcnt(0)")
    a("s_cmp_ge_u32 s2, 256")
    a("s_cbranch_scc1 L_end")
    stamp()
    a(f"""
    s_lshr_b32 s4, s2, 3
    s_lshr_b32 s{S_BR}, s4, 4
    s_xor_b32 s{S_BR}, s{S_BR}, 1
    s_mul_i32 s38, s{S_BR}, 40
    s_add_u32 s46, s0, s38
    s_addc_u32 s47, s1, 0
    s_load_dwordx8 s[48:55], s[46:47], 0
    s_load_dwordx2 s[56:57], s[46:47], 32
    s_load_dwordx4 s[40:43], s[0:1], 80
    s_load_dwordx2 s[44:45], s[0:1], 96
    v_lshrrev_b32 v1, 6, v0
    s_and_b32 s3, s2, 7
    s_and_b32 s{S_HP}, s4, 1
    v_readfirstlane_b32 s{S_W}, v1
    s_lshl_b32 s3, s3, 1
    s_add_u32 s{S_HP}, s{S_HP}, s3
    s_lshr_b32 s{S_B}, s4, 1
    s_and_b32 s{S_B}, s{S_B}, 7
    v_and_b32 v1, 63, v0
    s_cmp_ge_u32 s{S_W}, 4
    s_cbranch_scc1 L_loader
    """)
    compute(a, cfg, stamp)
    a("s_branch L_final")
    a.label("L_loader")
    a.hist = []; a.lgkm = []
    loader(a, cfg)
    a.label("L_final")
    a.hist = []; a.lgkm = []
    final(a, cfg, stamp, nst)
    a.label("L_end")
    a("s_endpgm")
    a.label("L_codeend")
    a.raw('.section .rodata,"a"')
    a.raw(".p2align 6")
    a.raw(f".amdhsa_kernel {NAME}_kernel")
    a.raw("  .amdhsa_next_free_vgpr 256")
    a.raw("  .amdhsa_next_free_sgpr 102")
    a.raw("  .amdhsa_accum_offset 256")
    a.raw("  .amdhsa_group_segment_fixed_size 0")
    a.raw("  .amdhsa_kernarg_size 104")
    a.raw("  .amdhsa_user_sgpr_count 2")
    a.raw("  .amdhsa_user_sgpr_kernarg_segment_ptr 1")
    a.raw("  .amdhsa_system_sgpr_workgroup_id_x 1")
    a.raw(".end_amdhsa_kernel")
    return a.text(), nst[0], a.npad

def ws_srds(a):
    a(f"""
    s_lshl_b32 s58, s{S_BR}, 3
    s_add_u32 s58, s58, s{S_B}
    s_mul_i32 s59, s58, {16*PART}
    s_add_u32 s{SRD_PR}, s44, s59
    s_addc_u32 s{SRD_PR+1}, s45, 0
    s_mov_b32 s{SRD_PR+2}, {16*PART}
    s_mov_b32 s{SRD_PR+3}, 0x20000
    s_mul_i32 s59, s{S_HP}, {PART}
    s_add_u32 s{SRD_PW}, s{SRD_PR}, s59
    s_addc_u32 s{SRD_PW+1}, s{SRD_PR+1}, 0
    s_mov_b32 s{SRD_PW+2}, {PART}
    s_mov_b32 s{SRD_PW+3}, 0x20000
    s_mov_b32 s{SRD_OUT}, s40
    s_mov_b32 s{SRD_OUT+1}, s41
    s_mov_b32 s{SRD_OUT+2}, {8*64*1152*2}
    s_mov_b32 s{SRD_OUT+3}, 0x20000
    s_lshl_b32 s39, s58, 4
    s_lshl_b32 s59, s58, 8
    s_add_u32 s59, s59, {FLAG_OFF}
    s_add_u32 s28, s44, s59
    s_addc_u32 s29, s45, 0
    """)

cW, cX, cK, cV, cO, cEw, cEr = 2, 3, 4, 5, 6, 7, 8
vM, vL0, vL1, vMC = 9, 10, 11, 12
vINV = 14
vLN16 = 13
AD = 16
TMP = 24
FR = 32
XF = 64
QF = 64
SA = 96
OA = 64
SP = 128
QA = 128
OF = 128
OW = 192
PA = 192
PK = 224

def vr(b, n): return f"v[{b}:{b+n-1}]"

def compute(a, cfg, stamp):
    a(f"""
    s_lshr_b32 s37, s{S_W}, 1
    s_and_b32 s38, s{S_W}, 1
    v_lshrrev_b32 v24, 5, v1
    v_bfe_u32 v25, v1, 4, 1
    v_bfe_u32 v26, v1, 2, 2
    v_and_b32 v27, 1, v1
    v_bfe_u32 v28, v1, 1, 1
    v_lshlrev_b32 v29, 5, v25
    v_lshl_add_u32 v30, v27, 4, v29
    v_lshl_add_u32 v30, v28, 3, v30
    v_lshl_add_u32 v31, v28, 4, v29
    v_lshl_add_u32 v31, v27, 3, v31
    """)
    a(f"""
    v_lshlrev_b32 v{cW}, 12, v24
    v_mul_u32_u24 v29, 576, v26
    v_add3_u32 v{cW}, v{cW}, v29, v30
    s_lshl_b32 s58, s37, 8
    v_add_u32 v{cW}, s58, v{cW}
    v_and_b32 v29, 31, v1
    v_bfe_u32 v27, v1, 1, 3
    v_xor_b32 v27, v27, v24
    v_lshlrev_b32 v27, 4, v27
    v_lshl_add_u32 v{cX}, v29, 7, v27
    s_lshl_b32 s58, s38, 12
    s_add_u32 s58, s58, 32768
    v_add_u32 v{cX}, s58, v{cX}
    s_lshl_b32 s58, s37, 14
    s_mul_i32 s58, s58, s{S_BR}
    v_and_b32 v27, 15, v1
    v_xor_b32 v27, v27, v24
    v_lshlrev_b32 v27, 4, v27
    v_lshl_add_u32 v{cK}, v29, 8, v27
    v_add_u32 v{cK}, s58, v{cK}
    v_lshlrev_b32 v{cV}, 10, v24
    v_mul_u32_u24 v29, 320, v26
    v_add3_u32 v{cV}, v{cV}, v29, v31
    v_add_u32 v{cV}, s58, v{cV}
    v_lshlrev_b32 v{cO}, 9, v24
    v_lshl_add_u32 v{cO}, v26, 7, v{cO}
    v_lshrrev_b32 v27, 1, v26
    v_xor_b32 v27, s37, v27
    v_lshl_add_u32 v{cO}, v27, 6, v{cO}
    v_add_u32 v{cO}, v{cO}, v30
    v_lshlrev_b32 v{vLN16}, 4, v1
    s_mul_i32 s58, s{S_W}, {SLOT}
    s_add_u32 s58, s58, 32768
    v_add_u32 v{cEw}, s58, v{vLN16}
    s_mul_i32 s58, s38, {SLOT}
    s_add_u32 s58, s58, 32768
    v_add_u32 v{cEr}, s58, v{vLN16}
    v_mov_b32 v{vM}, 0xff800000
    v_mov_b32 v{vL0}, 0
    v_mov_b32 v{vL1}, 0
    s_mov_b32 s{S_C}, {f32bits((128 ** -0.5) * math.log2(math.e)):#x}
    s_waitcnt lgkmcnt(0)
    """)
    ws_srds(a)
    a(f"""
    s_mov_b32 s74, s{S_B}
    s_lshl_b32 s75, s{S_W}, 11
    s_cmp_lg_u32 s{S_W}, 0
    s_cbranch_scc1 L_noclr
    s_lshl_b32 s58, s{S_HP}, 2
    v_mov_b32 v24, s58
    v_mov_b32 v25, 0
    v_mov_b32 v26, s39
    v_mov_b32 v27, 1
    s_mov_b64 exec, 1
    global_store_dword v24, v25, s[28:29] sc1
    s_waitcnt vmcnt(0)
    global_atomic_add v26, v27, s[42:43] sc1
    s_mov_b64 exec, -1
    L_noclr:
    """)

    NM = NG * 16
    post = [[] for _ in range(NM)]
    pre = []
    bubble = [[] for _ in range(NM)]
    mf = [None] * NM
    def put(pos, items):
        (pre if pos < 0 else post[pos]).extend(items)

    def addr_update(g):
        base = (g % NS) * SLOT
        L = []
        def base_add(dst, c):
            if base: L.append(f"v_add_u32 v{dst}, {base}, v{c}")
            else: L.append(f"v_mov_b32 v{dst}, v{c}")
        if g < G_K:
            base_add(AD, cW)
            for cb in range(1, 4): L.append(f"v_xor_b32 v{AD+cb}, {cb<<6}, v{AD}")
            base_add(AD + 4, cX)
            for t in range(1, 4): L.append(f"v_xor_b32 v{AD+4+t}, {t<<5}, v{AD+4}")
        elif g < G_V:
            base_add(AD, cK)
            for t in range(1, 8): L.append(f"v_xor_b32 v{AD+t}, {t<<5}, v{AD}")
        elif g < G_O:
            base_add(AD, cV)
            for db in range(1, 4): L.append(f"v_xor_b32 v{AD+db}, {db<<6}, v{AD}")
        else:
            base_add(AD, cO)
        return L

    for g in range(NG):
        b0 = g * 16
        au = addr_update(g)
        if g == 0:
            put(-1, au)
        else:
            h = (len(au) + 1) // 2
            put(b0 - 7, au[:h]); put(b0 - 6, au[h:])
        put(b0 - 5, ["@bar"])
        for f in range(16):
            buf = FR + 4 * (f % 8)
            rd = []
            if g < G_K:
                t, cb = divmod(f, 4)
                xb = XF + 4 * ((g * 4 + t) % 3)
                if cb == 0:
                    rd.append(f"ds_read_b128 {vr(xb,4)}, v{AD+4+t}")
                for u in range(2):
                    rd.append(f"ds_read_b64_tr_b16 {vr(buf+2*u,2)}, v{AD+cb} offset:{t*8192+u*2048}")
                acc = QA + 16 * cb
                c = "0" if (g == 0 and t == 0) else vr(acc, 16)
                mf[b0 + f] = f"v_mfma_f32_32x32x16_bf16 {vr(acc,16)}, {vr(buf,4)}, {vr(xb,4)}, {c}"
            elif g < G_V:
                kb, t = divmod(f, 8)
                rd.append(f"ds_read_b128 {vr(buf,4)}, v{AD+t} offset:{kb*8192}")
                acc = SA + 16 * kb
                c = "0" if t == 0 else vr(acc, 16)
                mf[b0 + f] = f"v_mfma_f32_32x32x16_bf16 {vr(acc,16)}, {vr(buf,4)}, {vr(QF+4*t,4)}, {c}"
            elif g < G_O:
                kt, db = divmod(f, 4)
                s = g - G_V
                for u in range(2):
                    rd.append(f"ds_read_b64_tr_b16 {vr(buf+2*u,2)}, v{AD+db} offset:{kt*4096+u*2048}")
                acc = OA + 16 * db
                c = "0" if (s == 0 and kt == 0) else vr(acc, 16)
                mf[b0 + f] = f"v_mfma_f32_32x32x16_bf16 {vr(acc,16)}, {vr(buf,4)}, {vr(SP+16*s+4*kt,4)}, {c}"
            else:
                ks = f
                for u in range(2):
                    rd.append(f"ds_read_b64_tr_b16 {vr(buf+2*u,2)}, v{AD} offset:{ks*2048+u*1024}")
                acc = PA + 16 * ((g - G_O) & 1)
                c = "0" if ks == 0 else vr(acc, 16)
                mf[b0 + f] = f"v_mfma_f32_32x32x16_bf16 {vr(acc,16)}, {vr(buf,4)}, {vr(OF+4*ks,4)}, {c}"
            put(b0 + RPOS[f], rd)

    def spread(items, p0, p1):
        n = p1 - p0 + 1
        for i, it in enumerate(items):
            post[p0 + i * n // len(items)].append(it)

    L = ["@stamp"]
    for cb in range(4):
        for p in range(8):
            L.append(f"v_cvt_pk_bf16_f32 v{QF+8*cb+p}, v{QA+16*cb+2*p}, v{QA+16*cb+2*p+1}")
    bubble[G_K * 16 - 1] = L

    def sproc(blk):
        acc = SA + 16 * (blk & 1)
        L = []
        for p in range(8):
            L.append(f"v_max3_f32 v{vM}, v{acc+2*p}, v{acc+2*p+1}, v{vM}")
            L.append(f"v_cvt_pk_bf16_f32 v{SP+8*blk+p}, v{acc+2*p}, v{acc+2*p+1}")
        return L
    for s in range(NK):
        b0 = (G_K + s) * 16
        spread(sproc(2 * s), b0 + 11, b0 + 15)
        if s + 1 < NK:
            spread(sproc(2 * s + 1), b0 + 16 + 2, b0 + 16 + 7)

    def pexp(i, k):
        t0 = TMP + 2 * (k % 4); t1 = t0 + 1
        r = SP + i
        return [f"v_lshlrev_b32 v{t0}, 16, v{r}",
                f"v_and_b32 v{t1}, 0xffff0000, v{r}",
                f"v_fma_f32 v{t0}, v{t0}, s{S_C}, -v{vMC}",
                f"v_fma_f32 v{t1}, v{t1}, s{S_C}, -v{vMC}",
                f"v_exp_f32 v{t0}, v{t0}",
                f"v_exp_f32 v{t1}, v{t1}",
                f"v_add_f32 v{vL0}, v{vL0}, v{t0}",
                f"v_add_f32 v{vL1}, v{vL1}, v{t1}",
                f"v_cvt_pk_bf16_f32 v{r}, v{t0}, v{t1}"]
    L = ["@stamp"] + sproc(2 * NK - 1)
    L += [f"v_mov_b32 v{TMP}, v{vM}",
          f"v_permlane32_swap_b32 v{TMP}, v{vM}",
          f"v_max_f32 v{vM}, v{TMP}, v{vM}",
          f"v_mul_f32 v{vMC}, s{S_C}, v{vM}"]
    for i in range(16): L += pexp(i, i)
    bubble[G_V * 16 - 1] = L
    for s in range(NV - 1):
        b0 = (G_V + s) * 16
        for i in range(16):
            post[b0 + i] += pexp(16 * (s + 1) + i, i)
    b0 = (G_O - 1) * 16
    post[b0 + 1] += [f"v_add_f32 v{vL0}, v{vL0}, v{vL1}", f"v_mov_b32 v{vL1}, v{vL0}"]
    post[b0 + 2] += [f"v_permlane32_swap_b32 v{vL0}, v{vL1}"]
    post[b0 + 3] += [f"v_add_f32 v{vL0}, v{vL0}, v{vL1}"]
    post[b0 + 4] += [f"v_rcp_f32 v{vINV}, v{vL0}"]
    post[b0 + 5] += [f"v_mov_b32 v{vINV+1}, v{vINV}"]
    L = ["@stamp"]
    for db in range(4):
        for p in range(8):
            r = OA + 16 * db + 2 * p
            L.append(f"v_pk_mul_f32 {vr(r,2)}, {vr(r,2)}, {vr(vINV,2)}")
        for p in range(8):
            r = OA + 16 * db + 2 * p
            L.append(f"v_cvt_pk_bf16_f32 v{OW+8*db+p}, v{r}, v{r+1}")
        for hf in range(2):
            L.append(f"ds_write_b128 v{cEw}, {vr(OW+8*db+4*hf,4)} offset:{(2*db+hf)*1024}")
    L.append(f"v_add_u32 v{TMP}, {2*SLOT}, v{cEr}")
    L.append("@bar")
    for hd in range(2):
        for i in range(8):
            L.append(f"ds_read_b128 {vr(OF+32*hd+4*i,4)}, v{cEr if hd == 0 else TMP} offset:{i*1024}")
    bubble[G_O * 16 - 1] = L

    def oproc(j):
        acc = PA + 16 * (j & 1); pk = PK + 8 * (j & 1)
        L = [f"s_lshl_b32 s73, s74, 13", "s_add_u32 s73, s73, s75",
             "s_add_u32 s74, s74, 1", "s_cmp_eq_u32 s74, 9", "s_cselect_b32 s74, 0, s74"]
        for p in range(8):
            L.append(f"v_cvt_pk_bf16_f32 v{pk+p}, v{acc+2*p}, v{acc+2*p+1}")
            if p % 4 == 3:
                i = p // 4
                if not cfg.nostore:
                    L.append(f"buffer_store_dwordx4 {vr(pk+4*i,4)}, v{vLN16}, s[{SRD_PW}:{SRD_PW+3}], s73 offen offset:{i*1024}{cfg.stpol}")
        return L
    for j in range(NO - 1):
        b0 = (G_O + j + 1) * 16
        spread(oproc(j), b0 + 2, b0 + 8)
    bubble[NM - 1] = ["@stamp"] + oproc(NO - 1)

    def emit(items):
        for it in items:
            if it == "@bar":
                a("s_waitcnt lgkmcnt(0)")
                a("s_barrier")
            elif it == "@stamp":
                stamp()
            else:
                a(it)
    emit(pre)
    for i in range(NM):
        if cfg.stamps and i == 0: stamp()
        a(mf[i])
        emit(post[i])
        emit(bubble[i])
    a("s_waitcnt vmcnt(0)")
    stamp()

def loader(a, cfg):
    LW = 37
    wp = cfg.wpol; kp = cfg.kvpol
    a(f"""
    s_sub_u32 s{LW}, s{S_W}, 4
    v_lshrrev_b32 v20, 5, v1
    v_and_b32 v21, 31, v1
    v_lshrrev_b32 v22, 3, v1
    v_lshrrev_b32 v23, 4, v1
    v_and_b32 v24, 7, v1
    v_and_b32 v25, 15, v1
    s_lshl_b32 s76, s{LW}, 12
    s_lshl_b32 s77, s{LW}, 16
    s_lshl_b32 s78, s{LW}, 11
    s_add_u32 s78, s78, 32768
    s_mul_i32 s79, s{LW}, {16*1152}
    s_mul_i32 s75, s{LW}, {32*1152}
    s_mov_b32 s74, s{S_B}
    """)
    def patK():
        for m in range(4):
            a(f"""
            v_add_u32 v26, {4*m}, v23
            v_xor_b32 v26, v26, v25
            v_lshlrev_b32 v26, 4, v26
            v_lshl_add_u32 v{10+m}, v23, 8, v26
            """)
        a(f"""
        v_lshlrev_b32 v26, 2, v23
        v_xor_b32 v26, v26, v25
        v_lshlrev_b32 v26, 4, v26
        v_lshl_add_u32 v14, v23, 8, v26
        """)
    def patW():
        for m in range(4):
            a(f"""
            v_add_u32 v26, {2*m}, v20
            v_and_b32 v27, 3, v26
            v_lshlrev_b32 v27, 2, v27
            v_xor_b32 v27, v27, v21
            v_lshlrev_b32 v27, 4, v27
            v_lshl_add_u32 v{4+m}, v26, 13, v27
            """)
            if m: a(f"v_subrev_u32 v{4+m}, {m*1024}, v{4+m}")
        for m in range(2):
            a(f"""
            v_add_u32 v26, {8*m}, v22
            v_add_u32 v27, {4*m}, v23
            v_xor_b32 v27, v27, v24
            v_lshlrev_b32 v27, 4, v27
            v_mul_u32_u24 v26, 1152, v26
            v_add_u32 v{8+m}, v26, v27
            """)
            if m: a(f"v_subrev_u32 v{8+m}, {m*1024}, v{8+m}")
    def patO():
        a(f"""
        v_and_b32 v26, 1, v23
        v_lshlrev_b32 v26, 2, v26
        v_xor_b32 v26, v26, v24
        v_lshlrev_b32 v26, 4, v26
        v_mul_u32_u24 v27, 1152, v22
        v_add_u32 v16, v26, v27
        v_lshlrev_b32 v15, 4, v1
        v_add_u32 v15, s76, v15
        """)
        for m in range(1, 4):
            a(f"v_add_u32 v{16+m}, {m*(8*1152-1024)}, v16")
    def srd(d, p, off, size):
        a(f"s_add_u32 s{d}, s{p}, s{off}")
        a(f"s_addc_u32 s{d+1}, s{p+1}, 0")
        a(f"s_mov_b32 s{d+2}, {size}")
        a(f"s_mov_b32 s{d+3}, 0x20000")
    def srdW():
        a(f"s_mul_i32 s38, s{S_B}, 73728"); srd(SRD_X, 48, 38, 73728)
        a(f"s_lshl_b32 s38, s{S_HP}, 9"); srd(SRD_WQ, 54, 38, 575 * 8192 + 512)
    def srdKV(isB):
        a(f"""
        s_lshl_b32 s38, s{S_B}, 4
        s_add_u32 s38, s38, s{S_HP}
        s_lshl_b32 s38, s38, {18 if isB else 17}
        """)
        srd(SRD_K, 50, 38, 262144 if isB else 131072); srd(SRD_V, 52, 38, 262144 if isB else 131072)
    def srdO():
        a(f"s_mul_i32 s38, s{S_HP}, 294912"); srd(SRD_WO, 56, 38, 294912)
    def lst(v, g):
        if cfg.lstamps:
            a("s_memrealtime s[82:83]")
            a("s_waitcnt lgkmcnt(0)")
            a(f"v_writelane_b32 v{v}, s82, {g}")

    def program(isB):
        tag = "B" if isB else "A"
        vm = []
        def ld(txt, t):
            a(txt); vm.append(t)
        pf = list(cfg.pfB if isB else cfg.pfA)
        nper = 8 if isB else 4
        preg = {t: 48 + 4 * nper * i for i, t in enumerate(pf)}
        assert 48 + 4 * nper * len(pf) <= 256
        def touch_lin(srdn, off_sgpr_setup):
            a(off_sgpr_setup)
            a(f"s_mul_i32 s59, s{LW}, {72*128}")
            a("s_add_u32 s58, s58, s59")
            ld(f"buffer_load_dword v28, v44, s[{srdn}:{srdn+3}], s58 offen{wp}", "t")
            a("s_add_u32 s58, s58, 8192")
            ld(f"buffer_load_dword v29, v45, s[{srdn}:{srdn+3}], s58 offen{wp}", "t")
        def touch_wq(srdn):
            a(f"s_mul_i32 s58, s{S_B}, 72")
            a(f"s_mul_i32 s59, s{LW}, 18")
            a("s_add_u32 s58, s58, s59")
            a("s_lshl_b32 s58, s58, 13")
            ld(f"buffer_load_dword v28, v46, s[{srdn}:{srdn+3}], s58 offen{wp}", "t")
            a(f"s_add_u32 s58, s58, {16*8192}")
            ld(f"buffer_load_dword v29, v47, s[{srdn}:{srdn+3}], s58 offen{wp}", "t")
        def pat_touch():
            a(f"""
            v_lshlrev_b32 v44, 7, v1
            v_lshlrev_b32 v45, 7, v22
            v_lshrrev_b32 v46, 2, v1
            v_lshlrev_b32 v46, 13, v46
            v_and_b32 v47, 3, v1
            v_lshl_add_u32 v46, v47, 7, v46
            v_lshlrev_b32 v47, 7, v47
            v_lshl_add_u32 v47, v20, 13, v47
            """)
        xhalf = f"s_and_b32 s58, s{S_HP}, 1\ns_mul_i32 s58, s58, {288*128}"
        woshare = f"s_mul_i32 s58, s{S_B}, {288*128}"
        def codepf():
            a(f"""
            s_getpc_b64 s[58:59]
            L_pc{tag}:
            s_lshr_b32 s38, s2, 3
            s_lshl_b32 s38, s38, 2
            s_add_u32 s38, s38, s{LW}
            s_lshl_b32 s38, s38, 9
            s_min_u32 s38, s38, L_codeend-{NAME}_kernel-512
            s_sub_u32 s58, s58, L_pc{tag}-{NAME}_kernel
            s_subb_u32 s59, s59, 0
            v_lshlrev_b32 v26, 3, v1
            v_add_u32 v26, s38, v26
            """)
            ld("global_load_dwordx2 v[30:31], v26, s[58:59]", "t")
        groups = []
        def gW(g, part):
            base = (g % NS) * SLOT
            def f():
                if part < 2:
                    a(f"s_lshl_b32 s58, s74, 19")
                    a(f"s_add_u32 m0, s76, {base + part*16384}")
                    a(f"s_add_u32 s58, s58, s77")
                    if part: a(f"s_add_u32 s58, s58, {32*8192}")
                    for m in range(4):
                        ld(f"buffer_load_dwordx4 v{4+m}, s[{SRD_WQ}:{SRD_WQ+3}], s58 offen offset:{m*1024}{wp} lds", g)
                else:
                    a(f"s_lshl_b32 s58, s74, 7")
                    a(f"s_add_u32 m0, s78, {base}")
                    a(f"s_add_u32 s58, s58, s79")
                    for m in range(2):
                        ld(f"buffer_load_dwordx4 v{8+m}, s[{SRD_X}:{SRD_X+3}], s58 offen offset:{m*1024}{wp} lds", g)
                    a("s_add_u32 s74, s74, 1")
                    a("s_cmp_eq_u32 s74, 9")
                    a("s_cselect_b32 s74, 0, s74")
            return f
        def kvsrc(g, hd):
            isK = g < G_V
            s = g - (G_K if isK else G_V)
            return (SRD_K if isK else SRD_V), s * 16384 + hd * 131072, (lambda m: 10 + m if isK else 14)
        def gKV(g, hd):
            base = (g % NS) * SLOT
            srdn, off, vo = kvsrc(g, hd)
            def f():
                a(f"s_add_u32 m0, s76, {base + hd*16384}")
                a(f"s_add_u32 s58, s76, {off}")
                for m in range(4):
                    ld(f"buffer_load_dwordx4 v{vo(m)}, s[{srdn}:{srdn+3}], s58 offen offset:{m*1024}{kp} lds", g)
            return f
        def gREG(g):
            base = (g % NS) * SLOT
            def f():
                a(f"v_add_u32 v26, {base}, v15")
                for hd in range(2 if isB else 1):
                    for m in range(4):
                        r = preg[g] + 16 * hd + 4 * m
                        a(f"ds_write_b128 v26, v[{r}:{r+3}] offset:{hd*16384 + m*1024}")
            return f
        def gO(g, part):
            base = (g % NS) * SLOT
            def f():
                a(f"s_lshl_b32 s58, s74, 7")
                a(f"s_add_u32 m0, s76, {base + part*16384}")
                a(f"s_add_u32 s58, s58, s75")
                if part: a(f"s_add_u32 s58, s58, {128*1152}")
                for m in range(4):
                    ld(f"buffer_load_dwordx4 v{16+m}, s[{SRD_WO}:{SRD_WO+3}], s58 offen offset:{m*1024}{wp} lds", g)
                if part:
                    a("s_add_u32 s74, s74, 1")
                    a("s_cmp_eq_u32 s74, 9")
                    a("s_cselect_b32 s74, 0, s74")
            return f
        regw = []
        for g in range(NG):
            if g < G_K:
                groups += [(g, 16384, gW(g, 0)), (g, 16384, gW(g, 1)), (g, 8192, gW(g, 2))]
            elif g < G_O:
                if g in pf: regw.append(g)
                else: groups += [(g, 16384, gKV(g, hd)) for hd in range(2 if isB else 1)]
            else:
                groups += [(g, 16384, gO(g, 0)), (g, 16384, gO(g, 1))]
        helpB = (not isB) and cfg.help
        if helpB:
            a("s_load_dwordx2 s[84:85], s[0:1], 40")
            a("s_load_dwordx4 s[88:91], s[0:1], 64")
        if pf:
            patK()
            a("s_waitcnt lgkmcnt(0)")
            srdKV(isB)
            first = True
            for t in pf:
                for hd in range(2 if isB else 1):
                    srdn, off, vo = kvsrc(t, hd)
                    a(f"s_add_u32 s58, s76, {off}")
                    for m in range(4):
                        r = preg[t] + 16 * hd + 4 * m
                        ld(f"buffer_load_dwordx4 v[{r}:{r+3}], v{vo(m)}, s[{srdn}:{srdn+3}], s58 offen offset:{m*1024}{kp}", "p")
                if first:
                    first = False
                    if cfg.codepf: codepf()
                    patW(); pat_touch(); srdW()
                    if not (isB and cfg.help):
                        touch_wq(SRD_WQ); touch_lin(SRD_X, xhalf)
        else:
            patW(); pat_touch()
            a("s_waitcnt lgkmcnt(0)")
            srdW()
        gi = [0]
        def issue_next():
            groups[gi[0]][2](); gi[0] += 1
        if not pf:
            while groups[gi[0]][0] == 0: issue_next()
            if cfg.xtouch: touch_lin(SRD_X, xhalf)
            if cfg.codepf: codepf()
            patK(); srdKV(isB)
        if helpB:
            a(f"s_mul_i32 s38, s{S_HP}, 294912"); srd(96, 90, 38, 294912)
            a(f"s_lshl_b32 s38, s{S_HP}, 9"); srd(92, 88, 38, 575 * 8192 + 512)
            a(f"s_mul_i32 s38, s{S_B}, 73728"); srd(84, 84, 38, 73728)
            touch_wq(92); touch_lin(84, xhalf)
        patO(); srdO()
        ws_srds(a)
        lead = cfg.leadB if isB else cfg.leadA
        wt = cfg.wotB if isB else cfg.wotA
        for g in range(NG):
            wrote = False
            while regw and regw[0] <= g + NS - 2:
                gREG(regw.pop(0))(); wrote = True
            if g == wt and cfg.wotouch:
                if not (isB and cfg.help): touch_lin(SRD_WO, woshare)
            if helpB and g == cfg.wotH and cfg.wotouch:
                touch_lin(96, woshare)
            while gi[0] < len(groups):
                t, nb, _ = groups[gi[0]]
                ahead = sum(x[1] for x in groups[:gi[0]] if x[0] > g)
                if t <= g or (t <= g + NS - 2 and ahead < lead): issue_next()
                else: break
            lst(42, g)
            last = max((i for i, t in enumerate(vm) if t == g), default=-1)
            if last >= 0:
                n = len(vm) - 1 - last
                assert n <= 63
                a(f"s_waitcnt vmcnt({n})" + (" lgkmcnt(0)" if wrote else ""))
            elif wrote:
                a("s_waitcnt lgkmcnt(0)")
            lst(40, g)
            a("s_barrier")
            lst(41, g)
            if g == G_O:
                while gi[0] < len(groups):
                    t, nb, _ = groups[gi[0]]
                    ahead = sum(x[1] for x in groups[:gi[0]] if x[0] > g + 1)
                    if t <= g + 1 or (t <= g + NS - 1 and ahead < lead): issue_next()
                    else: break
                a("s_barrier")
        assert gi[0] == len(groups) and not regw

    a(f"s_cmp_eq_u32 s{S_BR}, 0")
    a("s_cbranch_scc1 L_ldA")
    program(True)
    a("s_branch L_ldend")
    a.label("L_ldA")
    a.hist = []; a.lgkm = []
    program(False)
    a.label("L_ldend")
    if cfg.lstamps:
        a(f"""
        s_cmp_lg_u32 s{S_W}, 4
        s_cbranch_scc1 L_nols
        s_add_u32 s82, s44, {STAMP_OFF + (1 << 20)}
        s_addc_u32 s83, s45, 0
        s_mul_i32 s84, s2, 768
        v_lshlrev_b32 v43, 2, v1
        v_add_u32 v43, s84, v43
        global_store_dword v43, v40, s[82:83]
        global_store_dword v43, v41, s[82:83] offset:256
        global_store_dword v43, v42, s[82:83] offset:512
        L_nols:
        """)
    a(f"""
    s_cmp_lg_u32 s{S_W}, 4
    s_cbranch_scc1 L_chkd
    v_mov_b32 v6, s39
    s_mov_b32 s58, 0
    L_chk:
    global_load_dword v8, v6, s[42:43] sc1
    s_add_u32 s58, s58, 1
    s_waitcnt vmcnt(0)
    v_readfirstlane_b32 s59, v8
    s_cmp_ge_u32 s58, 0x10000
    s_cbranch_scc1 L_chkd
    s_cmp_ge_u32 s59, 16
    s_cbranch_scc1 L_chkd
    s_sleep 8
    s_branch L_chk
    L_chkd:
    """)

def final(a, cfg, stamp, nst):
    a(f"""
    s_mul_i32 s58, s{S_HP}, 288
    v_add_u32 v2, s58, v0
    v_lshlrev_b32 v3, 4, v2
    v_and_b32 v4, 31, v2
    v_bfe_u32 v5, v2, 7, 1
    v_lshl_add_u32 v4, v5, 5, v4
    s_lshl_b32 s58, s{S_B}, 6
    v_add_u32 v4, s58, v4
    v_mul_u32_u24 v4, 2304, v4
    v_lshrrev_b32 v5, 9, v2
    v_lshl_add_u32 v4, v5, 7, v4
    v_bfe_u32 v5, v2, 8, 1
    v_lshl_add_u32 v4, v5, 6, v4
    v_bfe_u32 v5, v2, 6, 1
    v_lshl_add_u32 v4, v5, 5, v4
    v_bfe_u32 v5, v2, 5, 1
    v_lshl_add_u32 v4, v5, 4, v4
    s_mul_i32 s58, s{S_BR}, 1152
    v_add_u32 v4, s58, v4
    s_barrier
    s_cmp_lg_u32 s{S_W}, 0
    s_cbranch_scc1 L_noset
    s_lshl_b32 s58, s{S_HP}, 2
    v_mov_b32 v6, s58
    v_mov_b32 v7, 1
    s_mov_b64 exec, 1
    global_store_dword v6, v7, s[28:29] sc1
    s_mov_b64 exec, -1
    L_noset:
    s_cmp_lg_u32 s{S_W}, 4
    s_cbranch_scc1 L_polled
    v_and_b32 v6, 15, v0
    v_lshlrev_b32 v6, 2, v6
    s_mov_b32 s58, 0
    L_poll:
    global_load_dword v8, v6, s[28:29] sc1
    s_add_u32 s58, s58, 1
    s_waitcnt vmcnt(0)
    v_cmp_ne_u32 vcc, 1, v8
    s_cmp_ge_u32 s58, 0x10000
    s_cbranch_scc1 L_polled
    s_cbranch_vccz L_polled
    s_sleep 1
    s_branch L_poll
    L_polled:
    s_barrier
    """)
    stamp()
    a(f"""
    v_cmp_gt_u32 vcc, 288, v0
    s_and_saveexec_b64 s[58:59], vcc
    s_cbranch_execz L_done
    s_mov_b32 s38, 0
    """)
    for m in range(16):
        a(f"buffer_load_dwordx4 v[{128+4*m}:{131+4*m}], v3, s[{SRD_PR}:{SRD_PR+3}], s38 offen sc1")
        if m < 15: a(f"s_add_u32 s38, s38, {PART}")
    for m in range(16):
        a(f"s_waitcnt vmcnt({15-m})")
        for d in range(4):
            r = 128 + 4 * m + d
            if m == 0:
                a(f"v_lshlrev_b32 v{16+2*d}, 16, v{r}")
                a(f"v_and_b32 v{17+2*d}, 0xffff0000, v{r}")
            else:
                a(f"v_lshlrev_b32 v{24+2*d}, 16, v{r}")
                a(f"v_and_b32 v{25+2*d}, 0xffff0000, v{r}")
                a(f"v_pk_add_f32 v[{16+2*d}:{17+2*d}], v[{16+2*d}:{17+2*d}], v[{24+2*d}:{25+2*d}]")
    for d in range(4):
        a(f"v_cvt_pk_bf16_f32 v{32+d}, v{16+2*d}, v{17+2*d}")
    a(f"buffer_store_dwordx4 v[32:35], v4, s[{SRD_OUT}:{SRD_OUT+3}], 0 offen")
    if cfg.stamps:
        a("s_waitcnt vmcnt(0)")
        stamp()
        n = nst[0]
        a(f"""
        s_cmp_lg_u32 s{S_W}, 0
        s_cbranch_scc1 L_done
        s_mov_b64 exec, 1
        s_add_u32 s44, s44, {STAMP_OFF}
        s_addc_u32 s45, s45, 0
        s_mul_i32 s38, s2, {8*n}
        v_mov_b32 v3, s38
        """)
        if cfg.dbgstamps:
            words = [w for w in range(1, 16) if w % 4]
            a(f"s_not_b32 s38, s{STAMP0}")
            a("v_mov_b32 v4, s38")
            a(f"v_mov_b32 v5, {words[0]*4}")
            a("global_atomic_umax v5, v4, s[42:43] sc1")
            for j in [n - 1]:
                a(f"v_mov_b32 v6, s{STAMP0+2*j}")
                a(f"v_mov_b32 v7, {words[1]*4}")
                a("global_atomic_umax v7, v6, s[42:43] sc1")
                a("s_nop 1")
            a("s_cmp_lg_u32 s2, 8")
            a("s_cbranch_scc1 L_nodb")
            for j in range(n):
                a(f"v_mov_b32 v6, s{STAMP0+2*j}")
                a(f"v_mov_b32 v7, {words[2+j]*4}")
                a("global_store_dword v7, v6, s[42:43] sc1")
                a("s_nop 1")
            a.label("L_nodb")
        for j in range(n):
            a(f"v_mov_b32 v4, s{STAMP0+2*j}")
            a(f"v_mov_b32 v5, s{STAMP0+2*j+1}")
            a(f"global_store_dwordx2 v3, v[4:5], s[44:45] offset:{8*j}")
            a("s_nop 1")
    a.label("L_done")

if __name__ == "__main__":
    out = sys.argv[1]
    kw = {}
    for arg in sys.argv[2:]:
        k, v = arg.split("=", 1)
        kw[k] = eval(v)
    txt, ns, npad = gen(Cfg(**kw))
    open(out, "w").write(txt)
    print(out, "lines", txt.count("\n"), "stamps", ns, "nop-pad states", npad)
```
